```python
import torch

def _softmax(x, axis=-1):
    return torch.softmax(x, dim=axis)

def _gelu(x):
    return torch.nn.functional.gelu(x, approximate='tanh')

def _silu(x):
    return torch.nn.functional.silu(x)

def _sigmoid(x):
    return torch.sigmoid(x)

def _layernorm(x, axis=-1, eps=1e-05):
    m = x.mean(dim=axis, keepdim=True)
    v = x.var(dim=axis, keepdim=True, unbiased=False)
    return (x - m) / torch.sqrt(v + eps)

def _scatter_add(tgt, idx, src, axis=0):
    return tgt.clone().index_add_(axis, idx, src)

def _segment_sum(src, seg, n):
    out = torch.zeros((n,) + src.shape[1:], dtype=src.dtype)
    return out.index_add_(0, seg, src)

def _pad(x, pw):
    flat = tuple((v for pair in reversed(pw) for v in pair))
    return torch.nn.functional.pad(x, flat)
kernel_name = 'concat_heads__memory_aug_recurrent_mem_tr__compressed_kv_cla__prompt'

def setup_inputs():

    _w = lambda a: (lambda t: t.to(torch.bfloat16) if t.is_floating_point() else t)(torch.as_tensor(a))

    def _A_setup():
        B, S, Dm = (1, 2048, 512)
        H, Dh = (32, 128)
        M, seg = (8, 32)
        seg = min(seg, S)
        S = S // seg * seg
        return {'x': _w((lambda *s: torch.randn(*s, dtype=torch.bfloat16) * 0.05)(B, S, Dm)), 'mem0': _w((lambda *s: torch.randn(*s, dtype=torch.bfloat16) * 0.4)(B, M, Dm)), 'Wq': _w((lambda *s: torch.randn(*s, dtype=torch.bfloat16) * 6.4)(Dm, H, Dh) * Dm ** (-0.5)), 'Wk': _w((lambda *s: torch.randn(*s, dtype=torch.bfloat16) * 6.4)(Dm, H, Dh) * Dm ** (-0.5)), 'Wv': _w((lambda *s: torch.randn(*s, dtype=torch.bfloat16) * 0.4)(Dm, H, Dh) * Dm ** (-0.5)), 'Wo': _w((lambda *s: torch.randn(*s, dtype=torch.bfloat16) * 0.4)(H, Dh, Dm) * (H * Dh) ** (-0.5)), 'seg_len': seg}
    _A_in = _A_setup()

    def _B_setup():
        B, H, Sq, Sk, D, M = (1, 32, 2048, 2048, 128, 512)
        Dc = 4 * D
        return {'x': _w((lambda *s: torch.randn(*s, dtype=torch.bfloat16) * 1.6)(B, Sq, M)), 'c_kv': _w((lambda *s: torch.randn(*s, dtype=torch.bfloat16) * 0.2)(B, Sk, Dc)), 'w_q': _w((lambda *s: torch.randn(*s, dtype=torch.bfloat16) * 3.2)(M, H, D) * M ** (-0.5)), 'w_uk': _w((lambda *s: torch.randn(*s, dtype=torch.bfloat16) * 3.2)(Dc, H, D) * Dc ** (-0.5)), 'w_uv': _w((lambda *s: torch.randn(*s, dtype=torch.bfloat16) * 0.2)(Dc, H, D) * Dc ** (-0.5)), 'w_o': _w((lambda *s: torch.randn(*s, dtype=torch.bfloat16) * 0.2)(H, D, M) * (H * D) ** (-0.5))}
    _B_in = _B_setup()
    return {'A_x': _A_in['x'], 'A_mem0': _A_in['mem0'], 'A_Wq': _A_in['Wq'], 'A_Wk': _A_in['Wk'], 'A_Wv': _A_in['Wv'], 'A_Wo': _A_in['Wo'], 'A_seg_len': _A_in['seg_len'], 'B_x': _B_in['x'], 'B_c_kv': _B_in['c_kv'], 'B_w_q': _B_in['w_q'], 'B_w_uk': _B_in['w_uk'], 'B_w_uv': _B_in['w_uv'], 'B_w_o': _B_in['w_o']}

def reference(A_x, A_mem0, A_Wq, A_Wk, A_Wv, A_Wo, A_seg_len, B_x, B_c_kv, B_w_q, B_w_uk, B_w_uv, B_w_o):

    def _A_ref(x, mem0, Wq, Wk, Wv, Wo, seg_len):
        B, S, Dm = x.shape
        H, Dh = (Wq.shape[1], Wq.shape[2])
        M = mem0.shape[1]
        scale = Dh ** (-0.5)
        n_seg = S // seg_len
        L = M + seg_len
        idx = torch.arange(L)
        mask = (idx[:, None] < M) | (idx[:, None] >= idx[None, :])
        mem = mem0
        outs = []
        for s in range(n_seg):
            xs = x[:, s * seg_len:(s + 1) * seg_len, :].clone()
            h = torch.concatenate([mem, xs], axis=1)
            q = torch.einsum('btd,dhe->bhte', h, Wq)
            k = torch.einsum('btd,dhe->bhte', h, Wk)
            v = torch.einsum('btd,dhe->bhte', h, Wv)
            scores = torch.einsum('bhqe,bhke->bhqk', q, k) * scale
            scores = torch.where(mask[None, None], scores, -1000000000.0)
            p = _softmax(scores, axis=-1)
            o = torch.einsum('bhqk,bhke->bhqe', p, v)
            o = torch.einsum('bhte,hed->btd', o, Wo)
            mem = o[:, :M, :].clone()
            outs.append(o[:, M:, :])
        return torch.concatenate(outs, axis=1)

    def _B_ref(x, c_kv, w_q, w_uk, w_uv, w_o):
        B, Sq, M = (x.shape[0], x.shape[1], x.shape[2])
        Sk = c_kv.shape[1]
        H, D = (w_q.shape[1], w_q.shape[2])
        q = torch.einsum('bqm,mhd->bhqd', x, w_q)
        k = torch.einsum('bkc,chd->bhkd', c_kv, w_uk)
        v = torch.einsum('bkc,chd->bhkd', c_kv, w_uv)
        scores = torch.einsum('bhqd,bhkd->bhqk', q, k) * D ** (-0.5)
        off = Sk - Sq
        qi = torch.arange(Sq)[:, None]
        kj = torch.arange(Sk)[None, :]
        cmask = kj <= qi + off
        scores = torch.where(cmask[None, None], scores, -1000000000.0)
        p = _softmax(scores, axis=-1)
        ctx = torch.einsum('bhqk,bhkd->bhqd', p, v)
        return torch.einsum('bhqd,hdm->bqm', ctx, w_o)
    a = _A_ref(A_x, A_mem0, A_Wq, A_Wk, A_Wv, A_Wo, A_seg_len)
    b = _B_ref(B_x, B_c_kv, B_w_q, B_w_uk, B_w_uv, B_w_o)
    return torch.concatenate([a, b], axis=-1)
```

```python
from common_gen import *
sW = 4; sWSR = 12
pS, pH = 20, 21
sT = 36
vL16, vKM, vVM, vT = 1, 2, 3, 4
MSK = 16; SX = 32; SM = 48; PX = 64; PM = 72; VM = 76; O = 96; STG = 160
aQ, aK, aV, aKM = 0, 32, 64, 96

def gen_aattn_setup(a):
    a(f"v_lshlrev_b32 v{vL16}, 4, v0")
    bits(a, vKM, [(5, 1, 7), (0, 3, 4)], vT, "v0")
    bits(a, vVM, [(5, 1, 8), (0, 4, 3), (4, 1, 2)], vT, "v0")
    a(f"v_and_b32 v{vT}, 31, v0\nv_lshrrev_b32 v{vT+1}, 5, v0\nv_lshlrev_b32 v{vT+1}, 2, v{vT+1}\nv_sub_u32 v{vT}, v{vT}, v{vT+1}\nv_mov_b32 v{vT+1}, 0xff800000")
    for r in range(16):
        a(f"v_cmp_gt_i32 vcc, {8*(r >> 2) + (r & 3)}, v{vT}\nv_cndmask_b32 v{MSK+r}, 0, v{vT+1}, vcc")
    a(f"v_mov_b64 {vr(PM+2, 2)}, 0")
    for db in range(4): a(f"v_mov_b64 {vr(VM + 4*db + 2, 2)}, 0")

def gen_aattn_task(a, st="", ld="", ldm=""):
    WSR = f"s[{sWSR}:{sWSR+3}]"
    a(f"""
    s_lshl_b32 s{sT}, s{pH}, 6
    s_add_u32 s{sT}, s{sT}, s{pS}
    s_lshl_b32 s{sT}, s{sT}, 13
    s_lshl_b32 s{sT+1}, s{pS}, 5
    s_add_u32 s{sT+1}, s{sT+1}, s{pH}
    s_lshl_b32 s{sT+2}, s{sT+1}, 12
    s_add_u32 s{sT+2}, s{sT+2}, {WS_KVM}
    s_lshl_b32 s{sT+1}, s{sT+1}, 13
    s_add_u32 s{sT+1}, s{sT+1}, {WS_CA}
    """)
    def blk(base, reg):
        for hf in range(2):
            a(f"s_add_u32 s{sT+3}, s{sT}, {base + hf*4096}")
            for i in range(4): a(f"buffer_load_dwordx4 {ar(reg + 16*hf + 4*i, 4)}, v{vL16}, {WSR}, s{sT+3} offen offset:{i*1024} {ld}")
    blk(WS_QA, aQ); blk(WS_KA, aK)
    for ks in range(8): a(f"buffer_load_dwordx4 {ar(aKM + 4*ks, 4)}, v{vKM}, {WSR}, s{sT+2} offen offset:{(ks >> 1)*1024 + 512 + (ks & 1)*256} {ldm}")
    blk(WS_VA, aV)
    for db in range(4):
        for e in range(2): a(f"buffer_load_dword v{VM + 4*db + e}, v{vVM}, {WSR}, s{sT+2} offen offset:{db*1024 + e*128} {ldm}")
    a("s_waitcnt vmcnt(24)")
    for ks in range(8): a(f"v_mfma_f32_32x32x16_bf16 {vr(SX, 16)}, {ar(aK + 4*ks, 4)}, {ar(aQ + 4*ks, 4)}, {vr(MSK if ks == 0 else SX, 16)}")
    a("s_waitcnt vmcnt(16)")
    for ks in range(8): a(f"v_mfma_f32_32x32x16_bf16 {vr(SM, 16)}, {ar(aKM + 4*ks, 4)}, {ar(aQ + 4*ks, 4)}, {'0' if ks == 0 else vr(SM, 16)}")
    m, t, l = vT, vT+1, vT+2
    a(f"v_max3_f32 v{m}, v{SX}, v{SX+1}, v{SX+2}")
    for r in range(3, 19, 2): a(f"v_max3_f32 v{m}, v{m}, v{SX+r}, v{SX+r+1}")
    a(f"v_max_f32 v{m}, v{m}, v{SM+3}\nv_mov_b32 v{t}, v{m}\nv_permlane32_swap_b32 v{m}, v{t}\nv_max_f32 v{m}, v{m}, v{t}")
    for r in range(20): a(f"v_sub_f32 v{SX+r}, v{SX+r}, v{m}")
    for r in range(20): a(f"v_exp_f32 v{SX+r}, v{SX+r}")
    for q in range(10): a(cvt(PX + q, SX + 2*q, SX + 2*q + 1))
    a("s_waitcnt vmcnt(0)")
    G = Gaps(); main = []
    for db in range(4):
        o = vr(O + 16*db, 16)
        main += [f"v_mfma_f32_32x32x16_bf16 {o}, {ar(aV + 8*db, 4)}, {vr(PX, 4)}, 0",
                 f"v_mfma_f32_32x32x16_bf16 {o}, {ar(aV + 8*db + 4, 4)}, {vr(PX + 4, 4)}, {o}",
                 f"v_mfma_f32_32x32x16_bf16 {o}, {vr(VM + 4*db, 4)}, {vr(PM, 4)}, {o}"]
    V = [f"v_add_f32 v{l}, v{SX}, v{SX+1}"] + [f"v_add_f32 v{l}, v{l}, v{SX+r}" for r in range(2, 20)]
    V += [f"v_mov_b32 v{t}, v{l}", "s_nop 1", f"v_permlane32_swap_b32 v{l}, v{t}", f"v_add_f32 v{l}, v{l}, v{t}", f"v_rcp_f32 v{l}, v{l}"]
    out = []
    for k, mm in enumerate(main):
        out.append(mm); out += V[5*k:5*k+5]
    a.extend(out)
    for f in range(8):
        b = O + 8*f
        for k in range(8): a(f"v_mul_f32 v{b+k}, v{b+k}, v{l}")
        for k in range(4): a(cvt(STG + 4*f + k, b + 2*k, b + 2*k + 1))
        if f == 4: a(f"s_add_u32 s{sT+1}, s{sT+1}, 4096")
        a(f"buffer_store_dwordx4 {vr(STG + 4*f, 4)}, v{vL16}, {WSR}, s{sT+1} offen offset:{(f & 3)*1024} {st}")
```

```python
import re

class Ins:
    __slots__ = ("text", "op", "kind", "dst", "src", "srcA", "srcB", "srcC", "passes", "label", "target", "ws", "flags", "comment")
    def __repr__(self): return self.text

REG_RE = re.compile(r"\b([vas])(?:(\d+)|\[(\d+):(\d+)\])")
TRANS = ("v_exp_f32", "v_log_f32", "v_rcp_f32", "v_rsq_f32", "v_sqrt_f32", "v_sin_f32", "v_cos_f32", "v_rcp_iflag_f32")

def regs_of(tok):
    tok = tok.strip()
    out = set()
    if re.fullmatch(r"-?(abs\()?vcc\)?", tok): return {("s", "vcc")}
    if tok in ("vcc_lo", "vcc_hi"): return {("s", "vcc")}
    if tok in ("exec", "exec_lo", "exec_hi"): return {("s", "exec")}
    if tok == "m0": return {("s", "m0")}
    for m in REG_RE.finditer(tok):
        t = m.group(1)
        if m.group(2) is not None: out.add((t, int(m.group(2))))
        else:
            for i in range(int(m.group(3)), int(m.group(4)) + 1): out.add((t, i))
    return out

def split_ops(s):
    ops, depth, cur = [], 0, ""
    for ch in s:
        if ch in "[(": depth += 1
        if ch in "])": depth -= 1
        if ch == "," and depth == 0:
            ops.append(cur.strip()); cur = ""
        else: cur += ch
    if cur.strip(): ops.append(cur.strip())
    return ops

def mfma_passes(op):
    if "32x32" in op: return 8
    if "16x16" in op: return 4
    if "4x4" in op: return 2
    raise ValueError(op)

def parse(line):
    i = Ins(); i.text = line; i.label = None; i.target = None; i.ws = 1; i.flags = set()
    i.dst = set(); i.src = set(); i.srcA = set(); i.srcB = set(); i.srcC = set(); i.passes = 0
    code = line.split(";")[0].strip()
    if not code or code.startswith("."):
        i.kind = "none"; i.op = ""; i.ws = 0
        if code.startswith(".p2align"): i.flags.add("align")
        return i
    if code.endswith(":"):
        i.kind = "label"; i.label = code[:-1]; i.op = ""; i.ws = 0; return i
    parts = code.split(None, 1)
    op = parts[0]; rest = parts[1] if len(parts) > 1 else ""
    for suf in ("_e32", "_e64"):
        if op.endswith(suf): op = op[:-4]
    i.op = op
    ops = split_ops(rest)
    mods = ""
    if ops:
        last = ops[-1].split(None, 1)
        if len(last) > 1 and not ops[-1].startswith("hwreg"):
            ops[-1] = last[0]; mods = last[1]
    if op == "s_nop":
        i.kind = "salu"; i.ws = int(ops[0], 0) + 1; return i
    if op in ("s_branch",) or op.startswith("s_cbranch"):
        i.kind = "branch"; i.target = ops[0]
        if "vcc" in op: i.src = {("s", "vcc")}
        return i
    if op == "s_endpgm": i.kind = "end"; return i
    if op in ("s_setpc_b64", "s_swappc_b64"):
        i.kind = "jump"; return i
    if op.startswith("v_mfma") or op.startswith("v_smfmac"):
        i.kind = "mfma"; i.passes = mfma_passes(op)
        i.dst = regs_of(ops[0]); i.srcA = regs_of(ops[1]); i.srcB = regs_of(ops[2])
        if op.startswith("v_smfmac"):
            i.srcC = set(i.dst); i.srcB |= regs_of(ops[3])
        else:
            i.srcC = regs_of(ops[3])
        i.src = i.srcA | i.srcB | i.srcC
        return i
    if op.startswith("v_"):
        i.kind = "valu"
        if op in TRANS: i.flags.add("trans")
        if op.endswith("_dpp") or "row_" in mods or "quad_perm" in mods: i.flags.add("dpp")
        if op.endswith("_sdwa") or "op_sel" in mods: i.flags.add("opsel")
        if op.startswith("v_permlane"):
            i.flags.add("permlane"); i.dst = regs_of(ops[0]) | regs_of(ops[1]); i.src = set(i.dst); return i
        if op.startswith("v_cmpx"): raise ValueError("avoid v_cmpx")
        if op in ("v_readfirstlane_b32", "v_readlane_b32"): i.flags.add("readlane")
        if op in ("v_readlane_b32", "v_writelane_b32"): i.flags.add("lanesel")
        i.dst = regs_of(ops[0])
        k = 1
        if op.startswith(("v_add_co", "v_sub_co", "v_subrev_co", "v_addc_co", "v_subb_co", "v_mad_u64", "v_div_scale")):
            i.dst |= regs_of(ops[1]); k = 2
        for o in ops[k:]: i.src |= regs_of(o)
        if op.startswith(("v_fmac", "v_dot2c", "v_pk_fmac", "v_writelane")) or "dpp" in i.flags: i.src |= regs_of(ops[0])
        return i
    if op.startswith(("buffer_", "global_", "flat_")):
        i.kind = "vmem"
        if op in ("buffer_wbl2", "buffer_inv"): return i
        islds = (" lds" in " " + mods) or "load_lds" in op
        if islds:
            i.flags.add("ldsdma")
            for o in ops: i.src |= regs_of(o)
            i.src |= {("s", "m0")}
        elif "_load" in op:
            i.dst = regs_of(ops[0])
            for o in ops[1:]: i.src |= regs_of(o)
        else:
            for o in ops: i.src |= regs_of(o)
            if op.startswith("buffer_"):
                data = regs_of(ops[0])
                if "atomic" in op and "sc0" in mods: i.dst = set(data)
            else:
                data = regs_of(ops[1]) if "atomic" not in op or len(ops) == 3 else regs_of(ops[2])
                if "atomic" in op and len(ops) == 4: i.dst = regs_of(ops[0])
            if op.endswith(("x3", "x4")): i.flags.add("widestore"); i.srcC = data
        return i
    if op.startswith("ds_"):
        i.kind = "ds"
        if "read" in op or "permute" in op or "swizzle" in op or "rtn" in op:
            i.dst = regs_of(ops[0])
            for o in ops[1:]: i.src |= regs_of(o)
        else:
            for o in ops: i.src |= regs_of(o)
        return i
    if op.startswith("s_"):
        i.kind = "salu"
        if op.startswith(("s_waitcnt", "s_barrier", "s_sleep", "s_setprio", "s_cmp", "s_bitcmp", "s_sethalt")):
            for o in ops: i.src |= regs_of(o)
            return i
        if ops:
            i.dst = regs_of(ops[0])
            for o in ops[1:]: i.src |= regs_of(o)
        if "saveexec" in op: i.dst |= {("s", "exec")}
        return i
    raise ValueError("cannot parse: " + line)

def vec(regs): return {r for r in regs if r[0] in "va"}
def sca(regs): return {r for r in regs if r[0] == "s"}

def need(p, c):
    n = 0
    if p.kind == "valu":
        pv = vec(p.dst); ps = sca(p.dst)
        if c.kind == "mfma":
            if pv & c.src: n = max(n, 2)
            if ("s", "exec") in ps: n = max(n, 4)
        if c.kind == "valu":
            if pv & c.src:
                if "dpp" in c.flags or "permlane" in c.flags: n = max(n, 2)
                if "readlane" in c.flags: n = max(n, 1)
                if "trans" in p.flags and "trans" not in c.flags: n = max(n, 1)
                if "opsel" in p.flags: n = max(n, 1)
            if "opsel" in p.flags and pv & c.dst: n = max(n, 1)
            if ps & c.src:
                n = max(n, 4 if "lanesel" in c.flags else 2)
            if c.op.startswith("v_cndmask") and ("s", "vcc") in ps: n = max(n, 2)
        if c.kind == "vmem" and ps & c.src: n = max(n, 5)
        if c.kind in ("vmem", "ds") and "trans" in p.flags and pv & c.src: n = max(n, 1)
        if c.kind == "salu" and ps & c.src: n = max(n, 1)
    if p.kind == "mfma":
        P = p.passes
        rd = {2: 5, 4: 8, 8: 12}[P]
        if c.kind == "mfma":
            if p.dst & (c.srcA | c.srcB): n = max(n, rd)
            if p.dst & c.srcC:
                if p.dst == c.srcC and c.passes == P: n = max(n, 2 if P == 2 else 0)
                else: n = max(n, P + 2)
            elif p.dst & c.dst: n = max(n, P + 2)
        if c.kind == "valu":
            if p.dst & (c.src | c.dst): n = max(n, rd)
            if p.srcC & c.dst: n = max(n, P - 1)
        if c.kind in ("vmem", "ds"):
            if p.dst & (c.src | c.dst): n = max(n, rd)
    if p.kind == "salu":
        if ("s", "m0") in p.dst and "ldsdma" in c.flags: n = max(n, 1)
    if p.kind == "vmem" and "widestore" in p.flags:
        if p.srcC & c.dst: n = max(n, 2 if c.kind in ("valu", "mfma") else 1)
    if p.kind != "valu" and c.kind == "valu" and "dpp" in c.flags and p.kind in ("mfma",): pass
    return n

MAXWS = 14

def fix_hazards(lines, verbose=False):
    ins = [parse(l) for l in lines]
    total = 0
    while True:
        labels = {x.label: k for k, x in enumerate(ins) if x.kind == "label"}
        preds = [[] for _ in ins]
        for k, x in enumerate(ins):
            fall = not (x.kind in ("end", "jump") or x.op == "s_branch")
            if fall and k + 1 < len(ins): preds[k + 1].append(k)
            if x.kind == "branch" and x.target in labels: preds[labels[x.target]].append(k)
        inserted = []
        for k, c in enumerate(ins):
            if c.kind not in ("valu", "mfma", "vmem", "ds", "salu"): continue
            if not (c.src or c.dst): continue
            worst = 0
            stack = [(p, 0) for p in preds[k]]
            seen = {}
            while stack:
                j, d = stack.pop()
                if d >= MAXWS: continue
                if j in seen and seen[j] <= d: continue
                seen[j] = d
                p = ins[j]
                if p.kind in ("valu", "mfma", "salu", "vmem"):
                    r = need(p, c)
                    if r - d > worst:
                        worst = r - d
                        why = p
                for q in preds[j]: stack.append((q, d + p.ws))
            if worst > 0:
                inserted.append((k, worst, why))
                break
        if not inserted: break
        k, n, why = inserted[0]
        if verbose: print(f"hazard: +{n} ws before [{ins[k].text.strip()}] after [{why.text.strip()}]")
        total += n
        ins.insert(k, parse(f"    s_nop {n-1} ; auto"))
    return [x.text for x in ins], total

def fix_hazards_fast(lines, verbose=False, relaxed=False):
    ins = [parse(l) for l in lines]
    total = 0
    changed = True
    while changed:
        changed = False
        labels = {x.label: k for k, x in enumerate(ins) if x.kind == "label"}
        br = {}
        for k, x in enumerate(ins):
            if x.kind == "branch" and x.target in labels: br.setdefault(x.target, []).append(x)
        idx = {id(x): k for k, x in enumerate(ins)}
        out = []
        def walk(seq, pos, d, c, seen, dm):
            worst, why = 0, None
            j = pos
            while j >= 0 and d < MAXWS:
                p = seq[j]
                if p.kind in ("end", "jump") or p.op == "s_branch":
                    if not (j == pos and seq is ins and p.kind == "branch"):
                        break
                if p.kind == "label":
                    for b in br.get(p.label, []):
                        key = (id(b))
                        if key in seen and seen[key] <= d: continue
                        seen[key] = d
                        w2, y2 = walk(ins, idx[id(b)], d, c, seen, dm)
                        if w2 > worst: worst, why = w2, y2
                if p.kind == "mfma" and relaxed:
                    if dm is not None: d = max(d, dm + p.passes - 2)
                    dm = d + 1
                if p.kind in ("valu", "mfma", "salu", "vmem"):
                    r = need(p, c)
                    if r - d > worst: worst, why = r - d, p
                d += p.ws
                j -= 1
            return worst, why
        for c in ins:
            if c.kind in ("valu", "mfma", "vmem", "ds", "salu") and (c.src or c.dst):
                w, why = walk(out, len(out) - 1, 0, c, {}, 0 if c.kind == 'mfma' else None)
                if w > 0:
                    if verbose: print(f"hazard: +{w} ws before [{c.text.strip()}] after [{why.text.strip()}]")
                    out.append(parse(f"    s_nop {w-1} ; auto")); total += w; changed = True
            out.append(c)
        ins = out
    return [x.text for x in ins], total

class Asm:
    def __init__(self): self.L = []; self.uid = 0
    def __call__(self, s):
        for l in s.split("\n"):
            l = l.strip()
            if not l: continue
            if l.endswith(":") or l.startswith("."): self.L.append(l)
            else: self.L.append("    " + l)
    def lab(self, base):
        self.uid += 1; return f"{base}_{self.uid}"
    def extend(self, lst):
        for l in lst: self(l)

def vr(b, n=1, t="v"):
    return f"{t}{b}" if n == 1 else f"{t}[{b}:{b+n-1}]"
def ar(b, n=1): return vr(b, n, "a")
def sr(b, n=1): return vr(b, n, "s")

def interleave(main, fill, per=None, start=0):
    out = []; fi = 0
    for k, m in enumerate(main):
        out.append(m)
        if k < start: continue
        n = per[k] if isinstance(per, (list, tuple)) else per
        for _ in range(n):
            if fi < len(fill): out.append(fill[fi]); fi += 1
    out += fill[fi:]
    return out

KD = """
.section .rodata,"a"
.p2align 6
.amdhsa_kernel {name}
  .amdhsa_next_free_vgpr {vgpr}
  .amdhsa_next_free_sgpr 102
  .amdhsa_accum_offset {acc}
  .amdhsa_group_segment_fixed_size 0
  .amdhsa_kernarg_size 128
  .amdhsa_user_sgpr_count 2
  .amdhsa_user_sgpr_kernarg_segment_ptr 1
  .amdhsa_system_sgpr_workgroup_id_x 1
.end_amdhsa_kernel
.text
"""
def kernel_text(name, lines, vgpr=512, acc=256, verbose=False, relaxed=False):
    fixed, n = fix_hazards_fast(lines, verbose, relaxed)
    head = f".globl {name}\n.p2align 8\n.type {name},@function\n{name}:\n"
    return head + "\n".join(fixed) + "\n" + KD.format(name=name, vgpr=vgpr, acc=acc), n
```

```python
from common_gen import *

sW = 4; sWSR = 12
pH, pI = 20, 21
sN2, sU2, sP, sG, sM0, sTHR, sNINF, sD2, sT = 22, 23, 24, 25, 26, 27, 28, 29, 36
vL16, vRD, vQL, vT = 1, 2, 3, 4
LA = 12
MXT = 16
S = [32, 64]; P = [96, 112]; NM = 128; STG = 160
aQ, aO, aF = 0, 64, 192; NF = 8; DIST = 5
STAGE = 32768

def gen_attn(a, st="", thr=24.0, diag=False):
    WSR = f"s[{sWSR}:{sWSR+3}]"
    a(f"""
    v_lshlrev_b32 v{vL16}, 4, v0
    v_mov_b32 v{vRD}, v{vL16}
    v_and_b32 v{vQL}, 31, v0
    v_lshrrev_b32 v{vT}, 5, v0
    v_lshlrev_b32 v{vT}, 2, v{vT}
    v_sub_u32 v{vQL}, v{vQL}, v{vT}
    s_mov_b32 s{sTHR}, {f32hex(thr)}
    s_mov_b32 s{sNINF}, 0xff800000
    s_lshl_b32 s{sU2}, s{pI}, 2
    s_add_u32 s{sN2}, s{sU2}, s{sW}
    s_add_u32 s{sN2}, s{sN2}, 1              ; n/2
    s_add_u32 s{sU2}, s{sU2}, 4              ; U/2
    s_lshl_b32 s{sT}, s{pH}, 19              ; h*512KB
    s_lshl_b32 s{sT+1}, s{sW}, 11
    s_add_u32 m0, s{sT+1}, {3*STAGE + 8192}
    s_add_u32 s{sT+2}, s{sT}, s{sT+1}
    s_add_u32 s{sT+2}, s{sT+2}, {WS_KB}
    buffer_load_dwordx4 v{vL16}, {WSR}, s{sT+2} offen lds
    buffer_load_dwordx4 v{vL16}, {WSR}, s{sT+2} offen offset:1024 lds
    s_lshl_b32 s{sT+1}, s{pI}, 16
    s_lshl_b32 s{sT+2}, s{sW}, 14
    s_add_u32 s{sT+1}, s{sT+1}, s{sT+2}
    s_add_u32 s{sT+1}, s{sT+1}, s{sT}
    s_add_u32 s{sT+1}, s{sT+1}, {WS_QB}
    """)
    for f in range(16):
        if f and f % 4 == 0: a(f"s_add_u32 s{sT+1}, s{sT+1}, 4096")
        a(f"buffer_load_dwordx4 {ar(aQ + 4*f, 4)}, v{vL16}, {WSR}, s{sT+1} offen offset:{(f & 3)*1024}")
    a(f"""
    s_lshl_b32 s{sM0}, s{sW}, 13
    s_add_u32 s{sG}, s{sT}, s{sM0}
    s_mov_b32 s{sT+1}, {WS_KB + 8192}
    s_cmp_ge_u32 s{sW}, 2
    s_cselect_b32 s{sT+1}, {WS_VB - 3*8192}, s{sT+1}
    s_add_u32 s{sG}, s{sG}, s{sT+1}
    s_cmp_eq_u32 s{sW}, 2
    s_cselect_b32 s{sT+3}, 8192, 0
    s_add_u32 s{sG}, s{sG}, s{sT+3}
    """)
    def dma():
        L = [[f"s_mov_b32 m0, s{sM0}"]]
        L += [[f"buffer_load_dwordx4 v{vL16}, {WSR}, s{sG} offen offset:{i*1024} lds"] for i in range(4)]
        L += [[f"s_add_u32 m0, s{sM0}, 4096", f"s_add_u32 s{sG}, s{sG}, 4096"]]
        L += [[f"buffer_load_dwordx4 v{vL16}, {WSR}, s{sG} offen offset:{i*1024} lds"] for i in range(4)]
        L += [[f"s_add_u32 s{sG}, s{sG}, {16384 - 4096}", f"s_add_u32 s{sM0}, s{sM0}, {STAGE}", f"s_and_b32 s{sM0}, s{sM0}, {4*STAGE - 1}"]]
        return L
    for x in dma(): a.extend(x)
    a(f"s_sub_u32 s{sG}, s{sG}, s{sT+3}")
    for x in dma(): a.extend(x)
    for r in range(128): a(f"v_accvgpr_write_b32 a{aO + r}, 0")
    for r in list(range(LA, LA + 4, 2)) + list(range(P[1], P[1] + 16, 2)) + list(range(NM, NM + 32, 2)): a(f"v_mov_b64 {vr(r, 2)}, 0")
    def diagmask(blk):
        L = []
        for r in range(16):
            L += [f"v_cmp_gt_i32 vcc, {8*(r >> 2) + (r & 3)}, v{vQL}", f"v_cndmask_b32 v{NM + 16*blk + r}, v{NM + 16*blk + r}, v{vT+7}, vcc"]
        return [f"v_mov_b32 v{vT+7}, s{sNINF}"] + L
    l0 = a.lab("at_nm0")
    a(f"s_cmp_lg_u32 s{sN2}, 1\ns_cbranch_scc1 {l0}")
    a.extend(diagmask(0))
    a(f"{l0}:")
    a(f"v_add_u32 v{vT}, {2*STAGE}, v{vL16}")
    a("s_waitcnt vmcnt(16)\ns_barrier")
    for f in range(8): a(f"ds_read_b128 {ar(aF + 4*f, 4)}, v{vT} offset:{STAGE + 8192 + f*1024}")
    def qk(sb, ks, blk, f):
        d = vr(S[sb] + 16*blk, 16)
        return f"v_mfma_f32_32x32x16_bf16 {d}, {ar(aF + 4*(f % NF), 4)}, {ar(aQ + 32*blk + 4*ks, 4)}, {vr(NM + 16*blk, 16) if ks == 0 else d}"
    def pv(pb, i, blk, f):
        d = ar(aO + 64*blk + 16*(i >> 1), 16)
        return f"v_mfma_f32_32x32x16_bf16 {d}, {ar(aF + 4*(f % NF), 4)}, {vr(P[pb] + 8*blk + 4*(i & 1), 4)}, {d}"
    for ks in range(8):
        a(f"s_waitcnt lgkmcnt({7 - ks})"); a(qk(0, ks, 0, ks)); a(qk(0, ks, 1, ks))
    def rescale(sb, pb, first):
        L = []
        for blk in range(2):
            s0 = S[sb] + 16*blk; d = vT; t = vT + 1; f = vT + 2
            L += [f"v_max3_f32 v{d}, v{s0}, v{s0+1}, v{s0+2}"]
            L += [f"v_max3_f32 v{d}, v{d}, v{s0+r}, v{s0+r+1}" for r in range(3, 15, 2)]
            L += [f"v_max_f32 v{d}, v{d}, v{s0+15}", f"v_mov_b32 v{t}, v{d}", f"v_permlane32_swap_b32 v{d}, v{t}", f"v_max_f32 v{d}, v{d}, v{t}"]
            if not first: L += [f"v_max_f32 v{d}, 0, v{d}", f"v_ceil_f32 v{d}, v{d}"]
            L += [f"v_sub_f32 v{s0+r}, v{s0+r}, v{d}" for r in range(16)]
            L += [f"v_sub_f32 v{NM+16*blk+r}, v{NM+16*blk+r}, v{d}" for r in range(16)]
            if not first:
                L += [f"v_sub_f32 v{f}, 0, v{d}", f"v_exp_f32 v{f}, v{f}"]
                L += [f"v_mul_f32 v{LA+2*blk+r}, v{LA+2*blk+r}, v{f}" for r in range(2)]
                for r in range(8):
                    pr = P[pb] + 8*blk + r
                    L += [f"v_lshlrev_b32 v{t}, 16, v{pr}", f"v_and_b32 v{pr}, 0xffff0000, v{pr}", f"v_mul_f32 v{t}, v{t}, v{f}", f"v_mul_f32 v{pr}, v{pr}, v{f}", cvt(pr, t, pr)]
                for r in range(0, 64, 4):
                    o = aO + 64*blk + r
                    L += [f"v_accvgpr_read_b32 v{vT+3+k}, a{o+k}" for k in range(4)]
                    L += [f"v_mul_f32 v{vT+3+k}, v{vT+3+k}, v{f}" for k in range(4)]
                    L += [f"v_accvgpr_write_b32 a{o+k}, v{vT+3+k}" for k in range(4)]
        return L
    def foff(g):
        body, r = g >> 4, g & 15
        return (body*8192 + r*1024) if r < 8 else (16384 + body*8192 + (r - 8)*1024)
    def fr(g):
        return f"ds_read_b128 {ar(aF + 4*(g % NF), 4)}, v{vRD} offset:{((g >> 5) & 1)*STAGE + foff(g & 31)}"
    a("s_waitcnt vmcnt(8)\ns_barrier")
    for g in range(DIST): a(fr(g))
    a.extend(rescale(0, 1, True))
    a(f"s_mov_b32 s{sP}, 0\ns_mov_b32 s{sD2}, {2*STAGE}")
    if diag: dstamp(a, 1)
    loop = a.lab("at_loop"); tails = [a.lab("at_tail0"), a.lab("at_tail1")]
    cold = []
    a(f"{loop}:")
    for sp in range(2):
        for b in range(2):
            hk = a.lab("at_hk"); hb = a.lab("at_hb")
            a(f"s_add_u32 s{sT}, s{sP}, {1 + b}\ns_cmp_eq_u32 s{sT}, s{sN2}\ns_cbranch_scc1 {hk}\n{hb}:")
            if b == 0: cold += [f"{hk}:"] + diagmask(1) + [f"v_mov_b32 v{NM+r}, v{vT+7}" for r in range(16)] + ["s_nop 1", f"s_branch {hb}"]
            else: cold += [f"{hk}:"] + diagmask(0) + ["s_nop 1", f"s_branch {hb}"]
            g0 = sp*32 + b*16
            cur, nxt = b, 1 - b
            main = []
            for ks in range(8): main += [qk(nxt, ks, 0, g0 + ks), qk(nxt, ks, 1, g0 + ks)]
            for i in range(8): main += [pv(nxt, i, 0, g0 + 8 + i), pv(nxt, i, 1, g0 + 8 + i)]
            G = Gaps()
            for k in range(16):
                if b == 1 and k + DIST == 16:
                    G.add(2*k - 1, "s_waitcnt vmcnt(8)", "s_barrier")
                    if sp == 1: G.add(2*k - 1, f"v_xor_b32 v{vRD}, s{sD2}, v{vRD}")
                G.add(2*k, fr(g0 + k + DIST))
                G.add(2*k + 1, f"s_waitcnt lgkmcnt({DIST - 1})")
            if b == 0:
                gp = [0, 1, 3, 5, 7, 8, 9, 11, 13, 15, 16]
                for x, g in zip(dma(), gp): G.add(g, x)
            V = []
            sv = S[cur]
            for q in range(16):
                r = sv + 2*q; blk = q >> 3
                V += [(8, f"v_exp_f32 v{r}, v{r}"), (8, f"v_exp_f32 v{r+1}, v{r+1}")]
                if q:
                    pr = r - 2; pb = (q - 1) >> 3
                    V += [(4, f"v_add_f32 v{LA+2*pb}, v{LA+2*pb}, v{pr}"), (4, f"v_add_f32 v{LA+2*pb+1}, v{LA+2*pb+1}, v{pr+1}"), (4, cvt(P[cur] + q - 1, pr, pr + 1))]
            V += [(4, f"v_add_f32 v{LA+2}, v{LA+2}, v{sv+30}"), (4, f"v_add_f32 v{LA+3}, v{LA+3}, v{sv+31}"), (4, cvt(P[cur] + 15, sv + 30, sv + 31))]
            sn = S[nxt]
            M = [f"v_max3_f32 v{MXT}, v{sn}, v{sn+1}, v{sn+2}", f"v_max3_f32 v{MXT+1}, v{sn+3}, v{sn+4}, v{sn+5}"]
            for k in range(13): M.append(f"v_max3_f32 v{MXT + (k & 1)}, v{MXT + (k & 1)}, v{sn+6+2*k}, v{sn+7+2*k}")
            M += [f"v_max_f32 v{MXT}, v{MXT}, v{MXT+1}", f"v_cmp_lt_f32 vcc, s{sTHR}, v{MXT}"]
            vi = 0; mi = 0
            for g in range(32):
                used = sum(4 for x in G.g.get(g, []) if not x.startswith("s_")) + 4*max(0, sum(1 for x in G.g.get(g, []) if x.startswith("s_")) - 1)
                cap = 24 - used
                if g >= 18:
                    for _ in range(2 if g >= 28 else 1):
                        if mi < len(M): G.add(g, M[mi]); mi += 1; cap -= 4
                lim = cap if g < 18 else min(cap, 16)
                while vi < len(V) and V[vi][0] <= lim:
                    G.add(g, V[vi][1]); lim -= V[vi][0]; vi += 1
            assert vi == len(V) and mi == len(M), (vi, len(V), mi)
            if sp == 0 and b == 0: a(f"s_waitcnt lgkmcnt({DIST - 1})")
            a.extend(G.weave(main))
            rp = a.lab("at_rare"); rb = a.lab("at_rb")
            if b == 1:
                a(f"s_add_u32 s{sP}, s{sP}, 1\ns_cmp_eq_u32 s{sP}, s{sN2}\ns_cbranch_scc1 {tails[1 - sp]}")
            a(f"s_cbranch_vccnz {rp}\n{rb}:")
            cold += [f"{rp}:"] + rescale(nxt, cur, False) + [f"s_branch {rb}"]
    a(f"s_branch {loop}")
    a.extend(cold)
    fin = a.lab("at_fin"); idle = a.lab("at_idle"); epi = a.lab("at_epi")
    for sp in range(2):
        a(f"{tails[sp]}:")
        a("s_waitcnt lgkmcnt(0)")
        for i in range(8): a(fr(sp*32 + 8 + i))
        if sp == 0: a(f"s_branch {fin}")
    a(f"{fin}:")
    for x in dma(): a.extend(x)
    for i in range(8):
        a(f"s_waitcnt lgkmcnt({7 - i})"); a(pv(1, i, 0, 8 + i)); a(pv(1, i, 1, 8 + i))
    a(f"{idle}:\ns_cmp_ge_u32 s{sP}, s{sU2}\ns_cbranch_scc1 {epi}\ns_waitcnt vmcnt(8)\ns_barrier\ns_add_u32 s{sP}, s{sP}, 1")
    for x in dma(): a.extend(x)
    a(f"s_branch {idle}\n{epi}:")
    if diag: dstamp(a, 2)
    a(f"""
    s_lshl_b32 s{sT}, s{pI}, 3
    s_lshl_b32 s{sT+1}, s{sW}, 1
    s_add_u32 s{sT}, s{sT}, s{sT+1}
    s_lshl_b32 s{sT}, s{sT}, 5
    s_add_u32 s{sT}, s{sT}, s{pH}
    s_lshl_b32 s{sT}, s{sT}, 13
    s_add_u32 s{sT}, s{sT}, {WS_CB}
    """)
    for blk in range(2):
        l = LA + 2*blk
        a(f"v_add_f32 v{l}, v{l}, v{l+1}\nv_mov_b32 v{l+1}, v{l}\nv_permlane32_swap_b32 v{l}, v{l+1}\nv_add_f32 v{l}, v{l}, v{l+1}\nv_rcp_f32 v{l}, v{l}")
        for f in range(8):
            t = S[0] + 8*(f & 3); o = aO + 64*blk + 8*f; d = STG + 4*(f + 8*blk)
            for k in range(8): a(f"v_accvgpr_read_b32 v{t+k}, a{o+k}")
            for k in range(8): a(f"v_mul_f32 v{t+k}, v{t+k}, v{l}")
            for k in range(4): a(cvt(d + k, t + 2*k, t + 2*k + 1))
            if f == 4: a(f"s_add_u32 s{sT}, s{sT}, 4096")
            a(f"buffer_store_dwordx4 {vr(d, 4)}, v{vL16}, {WSR}, s{sT} offen offset:{(f & 3)*1024} {st}")
        a(f"s_add_u32 s{sT}, s{sT}, {32*8192 - 4096}")
    a("s_waitcnt vmcnt(0)")
```

```python
from asmlib import *
from layout import *

LB = 131072
L_MEMT, L_QT, L_KT, L_KX, L_VX = 0, 8192, 12288, 16384, 24576
L_OX = L_QT

sH, sW = 3, 4
sSRDW, sWS, sDBG = 8, 12, 16
sSTEP = 20
sPB, sMEM, sKVM, sWARM, sKXO, sVXO, sM0K, sM0V, sRED, sPOLL, sMSTO, sTAG, sRED2, sPB2, sW10 = range(21, 36)
sML, sMR, sONE, sTHR = 40, 42, 44, 47
sC = 46
sT = 48
vLW, vIDX, vMRD, vLL, vQKW, vQKR, vOW, vWO, vGKX, vGVX, vPST, vMST = range(12)
vSEL = 12
M = 16; AQ = 48; AK = 56; AV = 64; QF = 72; KX = 88; SM = 120; VP = 124; vKMS = 126; vDUM = 127

def srd(a, s, base_s, nbytes):
    a(f"s_mov_b32 s{s}, s{base_s}\ns_mov_b32 s{s+1}, s{base_s+1}\ns_mov_b32 s{s+2}, {hex(nbytes)}\ns_mov_b32 s{s+3}, 0x00020000")

def wreg(mat, t, c):
    off = (t*8 + c)*8
    if mat == 0 and c < 3: return ("v", [KX, KX+16, QF][c] + 8*t)
    if mat == 3: return ("a", ((c & 1)*8 + t)*8)
    return [("a", off), ("a", 128 + off), ("v", 128 + off)][mat]

def bits(a, dst, terms, tmp, src="v0"):
    first = True
    for lo, width, sh in terms:
        a(f"v_bfe_u32 v{tmp}, {src}, {lo}, {width}")
        if first: a(f"v_lshlrev_b32 v{dst}, {sh}, v{tmp}"); first = False
        else: a(f"v_lshl_add_u32 v{dst}, v{tmp}, {sh}, v{dst}")

class Gaps:
    def __init__(self): self.g = {}
    def add(self, k, *ins):
        for x in ins:
            if isinstance(x, (list, tuple)): self.add(k, *x)
            else: self.g.setdefault(k, []).append(x)
    def spread(self, lst, k0, per=1):
        for i, x in enumerate(lst): self.add(k0 + i // per, x)
        return k0 + (len(lst) + per - 1) // per
    def weave(self, main):
        out = []
        def key(x):
            op = x.split()[0]
            if op.startswith("s_"): return 0
            if op.startswith(("ds_", "buffer_")): return 1
            return 2
        assert max(self.g, default=0) < len(main), (max(self.g), len(main))
        for k, m in enumerate(main):
            out.append(m)
            out += sorted(self.g.get(k, []), key=key)
        return out

def gen_chain(a, modes=("",), ld="sc1", kst="", own_prologue=True, diag=False, nsteps=64, rdelay=0, pdelay=0, hot=False, nopub=False, stamps=None, xst={}, thr=64.0, depth=2, rsp=24, psp=24, wsplit=(4, 2, 6, 0)):
    ADV = 0 if hot else 8192
    def stamp(k): return [f"s_memtime s[{64+2*k}:{65+2*k}]"] if diag and (stamps is None or k in stamps) else []
    WSR = f"s[{sWS}:{sWS+3}]"
    a(f"""
    s_load_dwordx2 s[{sT}:{sT+1}], s[0:1], {KA_WS}
    s_load_dwordx2 s[{sT+2}:{sT+3}], s[0:1], {KA_DBG}
    s_load_dwordx2 s[24:25], s[0:1], {KA_AWQ}
    s_load_dwordx2 s[26:27], s[0:1], {KA_AWK}
    s_load_dwordx2 s[28:29], s[0:1], {KA_AWV}
    s_load_dwordx2 s[30:31], s[0:1], {KA_AWO}
    s_load_dwordx2 s[32:33], s[0:1], {KA_MEM0}
    """)
    if own_prologue: a(f"v_lshrrev_b32 v16, 6, v0\nv_and_b32 v17, 63, v0\nv_readfirstlane_b32 s{sW}, v16")
    else: a("v_mov_b32 v17, v0")
    a("s_waitcnt lgkmcnt(0)")
    if diag: a("s_memrealtime s[84:85]")
    srd(a, sWS, sT, WS_SIZE)
    srd(a, sDBG, sT+2, 256)
    LN = "v17"
    def B(dst, terms): bits(a, dst, terms, 18, LN)
    def addS(dst, expr_lines, sreg=sT):
        a(expr_lines); a(f"v_add_u32 v{dst}, s{sreg}, v{dst}")
    B(vLL, [(0, 6, 4)]); a(f"v_mov_b32 v19, v{vLL}")
    a(f"v_add_u32 v{vLL}, {LB}, v{vLL}")
    a(f"s_lshl_b32 s{sT}, s{sW}, 11\nv_add_u32 v{vLW}, s{sT}, v{vLL}")
    a(f"""
    v_and_b32 v20, 2, {LN}
    v_cmp_eq_u32 s[{sML}:{sML+1}], 0, v20
    v_cmp_ne_u32 s[{sMR}:{sMR+1}], 0, v20
    v_mov_b32 v21, 0xeeee
    v_mov_b32 v22, 0x4444
    v_cndmask_b32 v{vIDX}, v21, v22, s[{sML}:{sML+1}]
    """)
    B(vMRD, [(5, 1, 8), (0, 2, 6), (4, 1, 5), (2, 2, 3)]); a(f"v_add_u32 v{vMRD}, {LB + L_MEMT}, v{vMRD}")
    B(vQKR, [(5, 1, 9), (4, 1, 7), (2, 2, 5)])
    a(f"v_lshrrev_b32 v20, 4, {LN}\nv_and_b32 v21, 3, {LN}\nv_xor_b32 v20, v20, v21\nv_lshl_add_u32 v{vQKR}, v20, 3, v{vQKR}\nv_add_u32 v{vQKR}, {LB}, v{vQKR}")
    B(vQKW, [(3, 1, 9), (0, 3, 5)])
    a(f"v_lshrrev_b32 v20, 4, {LN}\nv_bfe_u32 v21, {LN}, 2, 2\nv_xor_b32 v20, v20, v21\nv_lshl_add_u32 v{vQKW}, v20, 3, v{vQKW}")
    addS(vQKW, f"s_lshl_b32 s{sW10}, s{sW}, 10\ns_add_u32 s{sT}, s{sW10}, {LB}")
    a(f"""
    s_lshr_b32 s{sT}, s{sW}, 1
    s_lshl_b32 s{sT}, s{sT}, 10
    s_and_b32 s{sT+1}, s{sW}, 1
    s_lshl_b32 s{sT+1}, s{sT+1}, 3
    s_add_u32 s{sT}, s{sT}, s{sT+1}
    s_add_u32 s{sT}, s{sT}, {L_OX}
    v_add_u32 v{vOW}, s{sT}, v{vLL}
    s_lshl_b32 s{sT}, s{sW}, 15
    v_add_u32 v{vWO}, s{sT}, v19
    """)
    B(vGKX, [(4, 2, 9), (3, 1, 8), (0, 3, 4)])
    B(vGVX, [(4, 2, 9), (0, 4, 4)])
    B(vPST, [(2, 2, 13), (4, 2, 11), (0, 2, 4)])
    addS(vPST, f"s_lshl_b32 s{sT}, s{sW}, 16\ns_lshl_b32 s{sT+1}, s{sH}, 6\ns_add_u32 s{sT}, s{sT}, s{sT+1}")
    B(vMST, [(4, 1, 5), (0, 2, 3)])
    B(vKMS, [(4, 2, 7), (2, 2, 5), (0, 1, 4)])
    addS(vKMS, f"s_add_u32 s{sT}, s{sW10}, 512")
    a(f"""
    v_and_b32 v20, 1, {LN}
    v_mov_b32 v22, 0x3f80
    v_lshlrev_b32 v20, 4, v20
    v_lshlrev_b32 v22, v20, v22
    v_bfe_u32 v20, {LN}, 1, 3
    """)
    for k in range(4):
        a(f"v_cmp_eq_u32 vcc, {k}, v20\nv_cndmask_b32 v{vSEL+k}, 0, v22, vcc")
    a(f"s_mov_b32 s{sC}, {f32hex(QSCALE)}")
    a(f"""
    v_mov_b32 v24, -1
    v_mov_b32 v25, -1
    v_mov_b32 v26, -1
    v_mov_b32 v27, -1
    s_lshl_b32 s{sT}, s{sH}, 13
    s_add_u32 s{sT}, s{sT}, {WS_PB - LB}
    buffer_store_dwordx4 v[24:27], v{vLW}, {WSR}, s{sT} offen sc1
    buffer_store_dwordx4 v[24:27], v{vLW}, {WSR}, s{sT} offen offset:1024 sc1
    s_lshl_b32 s{sT}, s{sH}, 8
    s_lshl_b32 s{sT+1}, s{sW}, 13
    s_add_u32 s{sT}, s{sT}, s{sT+1}
    s_add_u32 s{sT}, s{sT}, {WS_MEM}
    v_lshlrev_b32 v20, 2, {LN}
    buffer_store_dword v24, v20, {WSR}, s{sT} offen sc1
    s_waitcnt vmcnt(0)
    v_mov_b32 v20, 0
    v_mov_b32 v22, 1
    s_mov_b64 exec, 1
    buffer_atomic_add v22, v20, s[{sDBG}:{sDBG+3}], 0 offen
    s_mov_b64 exec, -1
    """)
    B(28, [(2, 4, 13), (0, 2, 4)]); addS(28, f"s_lshl_b32 s{sT}, s{sW}, 6")
    rowterms = [(5, 1, 11), (3, 1, 10), (4, 1, 9), (2, 1, 6)]
    B(29, rowterms + [(1, 1, 5), (0, 1, 3)]); addS(29, f"s_lshl_b32 s{sT}, s{sW}, 15")
    B(27, rowterms + [(0, 2, 3)]); addS(27, f"s_lshl_b32 s{sT}, s{sW}, 15")
    B(30, [(3, 3, 10), (0, 3, 4)]); addS(30, f"s_lshl_b32 s{sT}, s{sW}, 8")
    B(31, [(4, 1, 12), (3, 1, 11), (5, 1, 9), (2, 1, 7), (0, 2, 3)]); addS(31, f"s_lshl_b32 s{sT}, s{sW}, 15")
    a(f"s_lshl_b32 s{sT+4}, s{sW}, 15\ns_lshl_b32 s{sT+5}, s{sH}, 8\ns_lshl_b32 s{sT+6}, s{sH}, 17")
    def dma_piece(pi):
        mat, p = pi >> 1, pi & 1
        if p == 0: srd(a, sSRDW, 24 + 2*mat, 4*MB)
        for i in range(16):
            a(f"s_add_u32 m0, s{sT+4}, {p*16384 + i*1024}")
            if mat < 3:
                a(f"s_add_u32 s{sT+7}, s{sT+5}, {(256*p + 16*i)*8192}")
                a(f"buffer_load_dwordx4 v28, s[{sSRDW}:{sSRDW+3}], s{sT+7} offen lds")
            else:
                a(f"s_add_u32 s{sT+7}, s{sT+6}, {8*i*1024 + p*128}")
                a(f"buffer_load_dwordx4 v30, s[{sSRDW}:{sSRDW+3}], s{sT+7} offen lds")
    def read_piece(pi):
        mat, p = pi >> 1, pi & 1
        if mat < 3:
            for cl in range(4):
                for t in range(2):
                    ty, b = wreg(mat, t, 4*p + cl)
                    for u in range(4):
                        off = p*16384 + (64*cl + 4*(u >> 1) + 2*(u & 1))*64 + t*(16 if mat < 2 else 32)
                        a(f"ds_read_b64_tr_b16 {vr(b+2*u, 2, ty)}, v{29 if mat < 2 else 27} offset:{off}")
            a("s_waitcnt lgkmcnt(0)")
        else:
            def rd(tl, c, ty, b):
                for u in range(4):
                    off = p*16384 + (64*c + 8*(u >> 1) + 2*(u & 1))*128 + tl*32
                    a(f"ds_read_b64_tr_b16 {vr(b+2*u, 2, ty)}, v31 offset:{off}")
            def wr(slot, b, n):
                for k in range(2*n): a(f"ds_write_b128 v{vWO}, {vr(b+4*k, 4)} offset:{slot*2048 + k*1024}")
            if p == 0:
                for tl in range(3):
                    for c in range(2): rd(tl, c, *wreg(3, tl, c))
                rd(3, 0, "v", 32); rd(3, 1, "v", 40)
                a("s_waitcnt lgkmcnt(0)"); wr(0, 32, 2)
            else:
                for rnd in range(2):
                    for k in range(4): rd(2*rnd + (k >> 1), k & 1, "v", 32 + 8*k)
                    a("s_waitcnt lgkmcnt(0)"); wr(2 + 4*rnd, 32, 4); a("s_waitcnt lgkmcnt(0)")
                wr(10, KX, 4); wr(14, QF, 2)
            a("s_waitcnt lgkmcnt(0)")
    dma_piece(0); dma_piece(1)
    for pi in range(8):
        a(f"s_waitcnt vmcnt({16 if pi < 7 else 0})")
        read_piece(pi)
        if pi + 2 < 8: dma_piece(pi + 2)
    srd(a, sSRDW, 32, 8192)
    a(f"v_lshlrev_b32 v20, 1, {LN}\ns_lshl_b32 s{sT}, s{sW}, 8\nv_add_u32 v20, s{sT}, v20")
    B(21, [(2, 2, 8), (5, 1, 5), (0, 2, 3), (4, 1, 2)])
    addS(21, f"s_lshl_b32 s{sT}, s{sW}, 11\ns_add_u32 s{sT}, s{sT}, {LB + L_MEMT}")
    for t in range(2):
        for i in range(8):
            a(f"s_mov_b32 s{sT+1}, {i*1024}")
            a(f"buffer_load_ushort v{32+t*8+i}, v20, s[{sSRDW}:{sSRDW+3}], s{sT+1} offen offset:{t*128}")
    a("s_waitcnt vmcnt(0)")
    for t in range(2):
        for i in range(8):
            a(f"ds_write_b16 v21, v{32+t*8+i} offset:{t*1024 + (i >> 1)*64 + (i & 1)*2}")
    a(f"""
    s_lshl_b32 s{sT+1}, s{sH}, 19
    s_lshl_b32 s{sT}, s{sW}, 11
    s_add_u32 s{sKXO}, s{sT+1}, s{sT}
    s_add_u32 s{sVXO}, s{sKXO}, {WS_VA}
    s_add_u32 s{sKXO}, s{sKXO}, {WS_KA}
    s_add_u32 s{sM0K}, s{sT}, {LB + L_KX}
    s_add_u32 s{sM0V}, s{sT}, {LB + L_VX}
    s_and_b32 s{sT}, s{sW}, 1
    s_lshl_b32 s{sT}, s{sT}, 12
    s_add_u32 s{sWARM}, s{sT+1}, s{sT}
    s_lshr_b32 s{sT}, s{sW}, 1
    s_mul_i32 s{sT}, s{sT}, {WS_VA - WS_KA}
    s_add_u32 s{sWARM}, s{sWARM}, s{sT}
    s_add_u32 s{sWARM}, s{sWARM}, {WS_KA + 8192 - 4*LB}
    s_lshl_b32 s{sKVM}, s{sH}, 12
    s_add_u32 s{sKVM}, s{sKVM}, {WS_KVM}
    s_lshl_b32 s{sRED}, s{sH}, 13
    s_add_u32 s{sRED}, s{sRED}, {WS_PB - LB}
    s_mov_b32 s{sONE}, 0x3f803f80
    s_mov_b32 s{sONE+1}, 0x3f803f80
    s_mov_b32 s{sTHR}, {f32hex(thr)}
    s_mov_b32 s{sPB}, {WS_PB}
    s_mov_b32 s{sPB2}, {WS_PB + 4*8192}
    """)
    def kx_dma():
        return [[f"s_mov_b32 m0, s{sM0K}", f"buffer_load_dwordx4 v{vGKX}, {WSR}, s{sKXO} offen lds"],
                [f"s_add_u32 m0, s{sM0K}, {1024 - 128}", f"buffer_load_dwordx4 v{vGKX}, {WSR}, s{sKXO} offen offset:128 lds"],
                [f"s_add_u32 s{sKXO}, s{sKXO}, {ADV}"]]
    def vx_dma():
        return [[f"s_mov_b32 m0, s{sM0V}", f"buffer_load_dwordx4 v{vGVX}, {WSR}, s{sVXO} offen lds"],
                [f"s_add_u32 m0, s{sM0V}, {1024 - 256}", f"buffer_load_dwordx4 v{vGVX}, {WSR}, s{sVXO} offen offset:256 lds"],
                [f"s_add_u32 s{sVXO}, s{sVXO}, {ADV}"]]
    for x in kx_dma() + vx_dma(): a.extend(x)
    lw = a.lab("ch_rdy"); lwd = a.lab("ch_rdyd")
    a(f"""
    v_mov_b32 v20, 0
    s_mov_b32 s{sT}, 0
    {lw}:
    buffer_load_dword v22, v20, s[{sDBG}:{sDBG+3}], 0 offen sc1
    s_waitcnt vmcnt(0)
    v_readfirstlane_b32 s{sT+1}, v22
    s_add_u32 s{sT}, s{sT}, 1
    s_cmp_gt_u32 s{sT}, 200000
    s_cbranch_scc1 {lwd}
    s_cmp_lt_u32 s{sT+1}, 128
    s_cbranch_scc1 {lw}
    {lwd}:
    s_mov_b32 s{sSTEP}, 0
    """)
    if diag: a("s_memrealtime s[86:87]\ns_memtime s[92:93]\ns_mov_b32 s90, 0\ns_mov_b32 s91, 0")
    zero = lambda r0, n: [f"v_mov_b64 {vr(r, 2)}, 0" for r in range(r0, r0 + n, 2)]
    a.extend(zero(AQ, 24))
    a(f"v_lshlrev_b32 v{SM}, 2, v{vLL}")
    a("s_waitcnt vmcnt(0) lgkmcnt(0)")
    endl = a.lab("ch_end"); slow = a.lab("ch_slow")
    if len(modes) == 2:
        a(f"""
        v_mov_b32 v20, 0
        buffer_load_dword v22, v20, s[{sDBG}:{sDBG+3}], 0 offen offset:{DBG_XCNT} sc1
        s_waitcnt vmcnt(0)
        v_readfirstlane_b32 s{sT+1}, v22
        s_cmp_lt_u32 s{sT+1}, 32
        s_cbranch_scc1 {slow}
        """)
    for mi, st in enumerate(modes):
        if mi == 1: a(f"{slow}:")
        loop = a.lab("ch_loop"); done = a.lab("ch_done"); first = a.lab("ch_first")
        a(f"s_branch {first}")

        def smf(mat, acc, c, t):
            ty, b = wreg(mat, t, c)
            return f"v_smfmac_f32_16x16x64_bf16 {vr(acc+4*t, 4)}, {vr(M+4*c, 4)}, {vr(b, 8, ty)}, v{vIDX}"
        def madd(b): return [f"v_add_f32 v{b}, v{b}, v{b+2}", f"v_add_f32 v{b+1}, v{b+1}, v{b+3}"]
        def cvt(d, x, y): return f"v_cvt_pk_bf16_f32 v{d}, v{x}, v{y}"
        def merge_dup(acc):
            return madd(acc) + [cvt(acc+2, acc, acc+1), cvt(acc+3, acc, acc+1)] + madd(acc+4) + [cvt(acc+6, acc+4, acc+5), cvt(acc+7, acc+4, acc+5)]
        def wr_dup(acc, reg): return [f"ds_write_b64 v{vQKW}, {vr(acc+2, 2)} offset:{reg}", f"ds_write_b64 v{vQKW}, {vr(acc+6, 2)} offset:{reg + 256}"]
        def rd_frag(dst, reg): return [f"ds_read_b64_tr_b16 {vr(dst+4*m+2*t, 2)}, v{vQKR} offset:{reg + (32*m + 8*t)*32}" for m in range(4) for t in range(2)]


        def nops(n):
            return ["s_nop 15"] * (n // 16) + ([f"s_nop {n % 16 - 1}"] if n % 16 else [])
        def xs_(ph, G):
            for g, k in xst.get(ph, {}).items(): G.add(g, f"s_memtime s[{64+2*k}:{65+2*k}]")
        RB = [M + 4, M + 12]; D = M + 20; CK = M + 24; PBUF = [AV, AK]
        KP = M + 28; TA = M + 26; NAN = SM + 2
        kxr = [f"ds_read_b128 {vr(KX+4*f, 4)}, v{vLL} offset:{L_KX + f*1024}" for f in range(8)]
        wqr = [f"ds_read_b128 {vr((KX if k < 8 else QF - 32) + 4*k, 4)}, v{vWO} offset:{10*2048 + k*1024}" for k in range(12)]
        pubrd = [f"v_add_u32 v{TA}, s{sW10}, v{vQKR}", f"v_lshrrev_b32 v{TA+1}, 1, v{vLW}", f"s_sub_u32 s{sT+3}, s{sKVM}, {LB // 2}",
                 f"ds_read_b64_tr_b16 {vr(KP, 2)}, v{TA} offset:{L_KT}", f"ds_read_b64_tr_b16 {vr(KP+2, 2)}, v{TA} offset:{L_KT + 256}"]
        pubst = [f"buffer_store_dwordx2 {vr(VP, 2)}, v{TA+1}, {WSR}, s{sT+3} offen {kst}",
                 f"s_mov_b64 exec, s[{sML}:{sML+1}]",
                 f"buffer_store_dwordx4 {vr(KP, 4)}, v{vKMS}, {WSR}, s{sKVM} offen {kst}",
                 "s_mov_b64 exec, -1",
                 f"s_add_u32 s{sKVM}, s{sKVM}, {32*4096}"]
        warm = f"buffer_load_dword v{vDUM}, v{SM}, {WSR}, s{sWARM} offen"
        def rload(k): return [f"buffer_load_dwordx4 {vr(RB[k]+4*u, 4)}, v{vLW}, {WSR}, s{sRED} offen offset:{u*1024} {ld}" for u in range(2)]
        def rproc(k, n):
            return [f"s_waitcnt vmcnt({n+1})", f"v_mfma_f32_16x16x32_bf16 {vr(D, 4)}, {vr(vSEL, 4)}, {vr(RB[k], 4)}, 0",
                    f"s_waitcnt vmcnt({n})", f"v_mfma_f32_16x16x32_bf16 {vr(D, 4)}, {vr(vSEL, 4)}, {vr(RB[k]+4, 4)}, {vr(D, 4)}",
                    f"v_xor_b32 v{CK}, s{sTAG}, v{RB[k]}", f"v_xor_b32 v{CK+1}, s{sTAG}, v{RB[k]+4}", f"v_or_b32 v{CK}, v{CK}, v{CK+1}",
                    f"v_and_b32 v{CK}, 1, v{CK}", f"v_cmp_ne_u32 vcc, 0, v{CK}"]
        def pload(k): return [f"buffer_load_dwordx4 {vr(PBUF[k]+4*u, 4)}, v{vLW}, {WSR}, s{sPOLL} offen offset:{u*1024} {ld}" for u in range(2)]
        def pproc(k, n):
            b = PBUF[k]
            return [f"s_waitcnt vmcnt({n+1})", f"ds_write_b128 v{vLW}, {vr(b, 4)} offset:{L_MEMT}",
                    f"s_waitcnt vmcnt({n})", f"ds_write_b128 v{vLW}, {vr(b+4, 4)} offset:{L_MEMT + 1024}",
                    f"v_max3_u32 v{CK}, v{b}, v{b+2}, v{b+4}", f"v_max_u32 v{CK}, v{CK}, v{b+6}", f"v_cmp_eq_u32 vcc, -1, v{CK}"]
        cold = []
        def poller(name, load, proc, between, cnt):
            ok = a.lab(name + "_ok"); rt = a.lab(name + "_rt")
            a.extend(load(0))
            if depth == 2:
                a.extend(between); a.extend(load(1)); a.extend(proc(0, 2))
            else:
                a.extend(between); a.extend(proc(0, 0))
            a(f"s_cbranch_vccnz {rt}\n{ok}:")
            c = [f"{rt}:", f"s_mov_b32 s{sT+2}, 0", f"{rt}l:"]
            inc = [f"s_add_u32 s{cnt}, s{cnt}, 1"] if diag else []
            if depth == 2:
                c += inc + load(0) + proc(1, 2) + [f"s_cbranch_vccz {ok}"] + inc + load(1) + proc(0, 2) + [f"s_cbranch_vccz {ok}"]
            else:
                c += inc + load(0) + proc(0, 0) + [f"s_cbranch_vccz {ok}"]
            c += [f"s_add_u32 s{sT+2}, s{sT+2}, 1", f"s_cmp_lt_u32 s{sT+2}, 20000", f"s_cbranch_scc1 {rt}l", f"s_branch {ok}"]
            cold.extend(c)
        w0, w1, w2, w3 = wsplit
        assert w0 + w1 + w2 + w3 == 12
        def wq_part(lo, n): return wqr[lo:lo+n] + (["s_waitcnt lgkmcnt(0)"] if n else [])
        a(f"{loop}:")
        a.extend(pubrd); a.extend(zero(AQ, 8)); a(f"v_mov_b64 {vr(NAN, 2)}, -1\nv_lshlrev_b32 v{SM}, 2, v{vLL}")
        a.extend(wq_part(0, w0))
        a.extend(nops(rdelay))
        poller("ch_red", rload, rproc, wq_part(w0, w1) + nops(rsp), 90)
        for r in range(4): a(f"v_add_f32_dpp v{D+r}, v{D+r}, v{D+r} row_ror:4 row_mask:0xf bank_mask:0xf")
        for r in range(4): a(f"v_add_f32_dpp v{D+r}, v{D+r}, v{D+r} row_ror:8 row_mask:0xf bank_mask:0xf")
        a(f"""
        v_cvt_pk_bf16_f32 v{D}, v{D}, v{D+1}
        v_cvt_pk_bf16_f32 v{D+1}, v{D+2}, v{D+3}
        s_mov_b64 exec, 0x000f000f
        s_xor_b32 s{sT}, s{sMSTO}, {2 << 13}
        buffer_store_dwordx2 {vr(D, 2)}, v{vMST}, {WSR}, s{sMSTO} offen {st}
        buffer_store_dwordx2 {vr(NAN, 2)}, v{vMST}, {WSR}, s{sT} offen {st}
        s_mov_b64 exec, -1
        """)
        a.extend(stamp(7))
        a.extend(wq_part(w0 + w1, w2))
        a.extend(nops(pdelay))
        poller("ch_pl", pload, pproc, wq_part(w0 + w1 + w2, w3) + nops(psp), 91)
        a.extend(stamp(8))
        a.extend(pubst)
        a("s_waitcnt lgkmcnt(0)")
        a(f"{first}:")
        a("s_barrier")
        mr = [f"ds_read_b64_tr_b16 {vr(M+4*c+2*t, 2)}, v{vMRD} offset:{c*1024 + t*512}" for c in range(8) for t in range(2)]
        a.extend(mr[:6]); a(warm)
        a.extend(stamp(0))
        qs = [smf(0, AQ, c, t) for c in range(8) for t in range(2)]
        G = Gaps()
        G.spread(mr[6:], 0)
        G.spread(kxr[:6], 10)
        for c in range(1, 8):
            g = 2*c - 1
            G.add(g, f"s_waitcnt lgkmcnt({min(16, 6 + g) + max(0, g - 10) - 2*(c+1)})")
        sal = [f"s_add_u32 s{sT+1}, s{sSTEP}, 1", f"s_and_b32 s{sT+1}, s{sT+1}, 3", f"s_lshl_b32 s{sT+1}, s{sT+1}, 13",
               f"s_add_u32 s{sPOLL}, s{sT+1}, {WS_MEM - LB}", "s_waitcnt vmcnt(3)", f"s_lshl_b32 s{sT}, s{sH}, 8",
               f"s_add_u32 s{sWARM}, s{sWARM}, {ADV}", f"s_add_u32 s{sT}, s{sT}, s{sT+1}"]
        for i, x in enumerate(sal): G.add(2*i, x)
        G.add(15, f"s_and_b32 s{sTAG}, s{sSTEP}, 1")
        G.spread(zero(AK, 16), 8)
        a("s_waitcnt lgkmcnt(4)")
        xs_("Q", G); a.extend(G.weave(qs))
        ks = [smf(1, AK, c, t) for c in range(8) for t in range(2)]
        G = Gaps()
        G.add(0, stamp(1)); G.spread(kxr[6:], 0)
        G.add(1, f"s_lshl_b32 s{sT+1}, s{sW}, 6"); G.add(2, f"s_add_u32 s{sT}, s{sT}, s{sT+1}"); G.add(3, f"s_add_u32 s{sMSTO}, s{sT}, {WS_MEM}")
        mq = merge_dup(AQ); wq = wr_dup(AQ, L_QT)
        G.add(1, mq[0:2]); G.add(2, mq[2:4]); G.add(3, wq[0], mq[4:6]); G.add(4, mq[6:8]); G.add(5, wq[1])
        G.add(10, "s_waitcnt lgkmcnt(0)", "s_barrier")
        rq = rd_frag(QF, L_QT)
        G.spread(rq[:6], 10)
        xs_("K", G); a.extend(G.weave(ks))
        SX = AQ
        xs = [f"v_mfma_f32_16x16x32_bf16 {vr(SX+4*kt, 4)}, {vr(KX+4*(2*m+kt), 4)}, {vr(QF+4*m, 4)}, {'0' if m == 0 else vr(SX+4*kt, 4)}" for m in range(4) for kt in range(2)]
        G = Gaps()
        mk_ = merge_dup(AK); wk = wr_dup(AK, L_KT)
        kd = kx_dma(); vd = vx_dma()
        G.add(0, stamp(2), rq[6:8])
        G.add(1, "s_waitcnt lgkmcnt(4)", mk_[0:2]); G.add(2, mk_[2:4]); G.add(3, "s_waitcnt lgkmcnt(2)", wk[0], mk_[4:6]); G.add(4, kd[0][0], mk_[6:8]); G.add(5, "s_waitcnt lgkmcnt(1)", wk[1])
        G.add(6, kd[0][1]); G.add(7, kd[1][0])
        a("s_waitcnt lgkmcnt(4)")
        xs_("X", G); a.extend(G.weave(xs))
        KM = KX; VX = KX + 16; PB_ = KX + 24; ONES = KX + 28
        O0 = AK; O1 = AK + 4; LS = SX
        MX, TM, MM, AL = SX+4, SX+5, SX+6, SX+7
        vs = [smf(2, AV, c, t) for c in range(8) for t in range(2)]
        ms = [f"v_mfma_f32_16x16x32_bf16 {vr(SM, 4)}, {vr(KM+4*m, 4)}, {vr(QF+4*m, 4)}, {'0' if m == 0 else vr(SM, 4)}" for m in range(4)]
        rk = rd_frag(KM, L_KT)
        rv = [f"ds_read_b128 {vr(VX, 4)}, v{vLW} offset:{L_VX}",
              f"ds_read_b64 {vr(VX+6, 2)}, v{vLW} offset:{L_VX + 1024}", f"ds_read_b64 {vr(VX+4, 2)}, v{vLW} offset:{L_VX + 1032}"]
        QP = "quad_perm:[2,3,0,1] row_mask:0xf bank_mask:0xf"
        WB = [QF, QF+8, KM, KM+8, VX, PB_, AV, SX]
        def wo_read(f): return [f"ds_read_b128 {vr(WB[(f-6) % 8]+4*hf, 4)}, v{vWO} offset:{((f-6)*2 + hf)*1024}" for hf in range(2)]
        px = [f"v_mfma_f32_16x16x32_bf16 {vr(O0, 4)}, {vr(VX, 4)}, {vr(PB_, 4)}, 0",
              f"v_mfma_f32_16x16x32_bf16 {vr(O1, 4)}, {vr(VX+4, 4)}, {vr(PB_, 4)}, 0",
              f"v_mfma_f32_16x16x32_bf16 {vr(LS, 4)}, {vr(ONES, 4)}, {vr(PB_, 4)}, 0"]
        EXR = f"s_mov_b64 exec, s[{sMR}:{sMR+1}]"; EXA = "s_mov_b64 exec, -1"
        m64 = lambda d, x: f"v_mov_b64 {vr(d, 2)}, {vr(x, 2)}"
        fm = lambda d, r, m: f"v_fma_f32 v{d}, v{r}, s{sC}, -v{m}"
        ex = lambda r: f"v_exp_f32 v{r}, v{r}"
        seq = vs[:10] + ms + vs[10:14] + px + vs[14:]
        G = Gaps()
        G.add(0, stamp(3), kd[1][1], f"v_mov_b64 {vr(ONES, 2)}, s[{sONE}:{sONE+1}]")
        G.add(1, EXR, m64(SX, SX+4), m64(SX+2, SX+6))
        G.add(2, EXA, "s_waitcnt lgkmcnt(0)", "s_barrier", rk[0], f"v_max3_f32 v{MX}, v{SX}, v{SX+1}, v{SX+2}")
        G.add(3, kd[2], rk[1], f"v_max_f32 v{MX}, v{MX}, v{SX+3}"); G.add(4, rk[2], f"v_max_f32_dpp v{MX}, v{MX}, v{MX} {QP}", f"v_mov_b32 v{TM}, v{MX}")
        G.add(5, rk[3], f"v_permlane16_swap_b32 v{MX}, v{TM}"); G.add(6, rk[4], f"v_max_f32 v{MX}, v{MX}, v{TM}", f"v_mov_b32 v{TM}, v{MX}")
        G.add(7, rk[5], f"v_permlane32_swap_b32 v{MX}, v{TM}"); G.add(8, rk[6], f"v_max_f32 v{MX}, v{MX}, v{TM}", f"v_mul_f32 v{TM}, s{sC}, v{MX}")
        G.add(9, "s_waitcnt lgkmcnt(5)", rk[7], fm(SX, SX, TM), fm(SX+1, SX+1, TM))
        G.add(10, "s_waitcnt lgkmcnt(4)", fm(SX+2, SX+2, TM), fm(SX+3, SX+3, TM))
        G.add(11, "s_waitcnt lgkmcnt(2)", ex(SX)); G.add(12, "s_waitcnt lgkmcnt(0)", ex(SX+1)); G.add(13, rv[0], ex(SX+2))
        G.add(14, rv[1], ex(SX+3)); G.add(15, rv[2], cvt(PB_, SX, SX+1), cvt(PB_+1, SX+2, SX+3))
        pre = wo_read(6) + wo_read(7) + wo_read(8)
        G.add(16, pre[0], f"v_mov_b64 {vr(ONES+2, 2)}, s[{sONE}:{sONE+1}]", f"v_mov_b32_dpp v{PB_+2}, v{PB_} {QP}", f"v_mov_b32_dpp v{PB_+3}, v{PB_+1} {QP}")
        G.add(17, pre[1], fm(SM+2, SM, TM), fm(SM+3, SM+1, TM), "s_waitcnt lgkmcnt(1)")
        G.add(18, f"v_max_f32 v{MM}, v{SM+2}, v{SM+3}", f"v_cmp_lt_f32 vcc, s{sTHR}, v{MM}")
        G.add(19, vd[0][0], ex(SM+2)); G.add(20, ex(SM+3))
        G.add(21, pre[2], cvt(SM+2, SM+2, SM+3))
        G.add(22, EXR, m64(O0, O1), m64(O0+2, O1+2))
        xs_("V", G); a.extend(G.weave(seq))
        rare = a.lab("ch_rare"); back = a.lab("ch_back")
        a(f"{EXA}\ns_cbranch_vccnz {rare}\n{back}:")
        cold += [f"{rare}:", f"v_max3_f32 v{MM}, v{SM}, v{SM+1}, v{MX}",
                 f"v_mov_b32 v{AL}, v{MM}", f"v_permlane16_swap_b32 v{MM}, v{AL}", f"v_max_f32 v{MM}, v{MM}, v{AL}",
                 f"v_mov_b32 v{AL}, v{MM}", f"v_permlane32_swap_b32 v{MM}, v{AL}", f"v_max_f32 v{MM}, v{MM}, v{AL}",
                 f"v_mul_f32 v{MM}, s{sC}, v{MM}", f"v_sub_f32 v{AL}, v{TM}, v{MM}", fm(SM+2, SM, MM), fm(SM+3, SM+1, MM),
                 ex(AL), ex(SM+2), ex(SM+3), cvt(SM+2, SM+2, SM+3), f"v_mul_f32 v{LS}, v{LS}, v{AL}"]
        cold += [f"v_mul_f32 v{O0+r}, v{O0+r}, v{AL}" for r in range(4)] + [f"s_branch {back}"]
        a.extend(stamp(4))
        L = [f"v_cndmask_b32 v{SM}, 0, v{SM+2}, s[{sML}:{sML+1}]", f"v_cndmask_b32 v{SM+1}, 0, v{SM+2}, s[{sMR}:{sMR+1}]"]
        L += madd(AV)
        L += [f"v_mfma_f32_16x16x16_bf16 {vr(LS, 4)}, {vr(ONES, 2)}, {vr(SM, 2)}, {vr(LS, 4)}"]
        L += [cvt(VP, AV, AV+1)] + madd(AV+4) + [cvt(VP+1, AV+4, AV+5)] + zero(M, 4)
        L += [f"v_mfma_f32_16x16x16_bf16 {vr(O0, 4)}, {vr(VP, 2)}, {vr(SM, 2)}, {vr(O0, 4)}"]
        L += [pre[3], vd[0][1], vd[1][0]]
        L += [f"v_rcp_f32 v{TM}, v{LS}"] + zero(M+4, 6)
        L += [f"v_mul_f32 v{O0+r}, v{O0+r}, v{TM}" for r in range(4)]
        L += [cvt(O0, O0, O0+1), cvt(O0+1, O0+2, O0+3)]
        L += [f"s_cmp_eq_u32 s{sSTEP}, {nsteps-1}", f"ds_write_b64 v{vOW}, {vr(O0, 2)}", vd[1][1]]
        L += zero(M+10, 22)
        L += ["s_waitcnt lgkmcnt(0)", "s_barrier"]
        OA = AK
        L += [f"ds_read_b128 {vr(OA, 4)}, v{vLL} offset:{L_OX}", f"ds_read_b128 {vr(OA+4, 4)}, v{vLL} offset:{L_OX + 1024}"]
        L += [f"s_cbranch_scc1 {done}"] + stamp(5)
        L += pre[4:6] + wo_read(9) + vd[2]
        a.extend(L)
        def wob(f):
            if f < 6:
                ty, b = wreg(3, f >> 1, f & 1); return vr(b, 8, ty)
            return vr(WB[(f-6) % 8], 8)
        ws_ = [f"v_smfmac_f32_16x16x64_bf16 {vr(M+4*(f >> 1), 4)}, {vr(OA+4*(f & 1), 4)}, {wob(f)}, v{vIDX}" for f in range(16)]
        G = Gaps()
        rds = [x for f in range(10, 16) for x in wo_read(f)]
        place = [0, 1, 2, 3, 4, 5, 6, 7, 8, 9, 10, 11]
        for x, g in zip(rds, place): G.add(g, x)
        G.add(0, "s_waitcnt lgkmcnt(4)")
        for f in range(8, 16):
            issued = 4 + sum(1 for g in place if g < f - 1)
            G.add(f - 1, f"s_waitcnt lgkmcnt({issued - 2*(f - 7)})")
        PK = [SM, M]
        def tmerge(t):
            b = M + 4*t; d = PK[t >> 2] + (t & 3)
            L = madd(b) + [cvt(d, b, b+1)]
            if t & 3 == 0: L += [f"v_and_or_b32 v{d}, v{d}, -2, s{sTAG}"]
            return L
        pst = lambda q: f"buffer_store_dwordx4 {vr(PK[q], 4)}, v{vPST}, {WSR}, s{[sPB, sPB2][q]} offen {st}"
        for t in range(7):
            m_ = tmerge(t); g = min(2*t + 3, 15)
            G.add(g, m_[:2]); G.add(min(g + 1, 15), m_[2:])
        G.add(11, pst(0))
        a("s_waitcnt lgkmcnt(5)")
        xs_("W", G); a.extend(G.weave(ws_))
        a.extend(tmerge(7)); a(f"s_add_u32 s{sSTEP}, s{sSTEP}, 1"); a(pst(1))
        a.extend(stamp(6))
        a(f"s_branch {loop}")
        a.extend(cold)
        a(f"{done}:\ns_waitcnt lgkmcnt(0)")
        a.extend(pubrd); a("s_waitcnt lgkmcnt(0)"); a.extend(pubst)
        a("s_waitcnt vmcnt(0) lgkmcnt(0)")
        if mi == 0 and len(modes) == 2: a(f"s_branch {endl}")
    a(f"{endl}:")
    if diag:
        a(f"s_lshl_b32 s{sT}, s{sH}, 2\ns_add_u32 s{sT}, s{sT}, s{sW}\ns_lshl_b32 s{sT}, s{sT}, 6\ns_add_u32 s{sT}, s{sT}, {WS_DIAG - LB // 4}")
        a("s_memrealtime s[88:89]\ns_memtime s[94:95]\ns_waitcnt lgkmcnt(0)\ns_sub_u32 s94, s94, s92")
        for k in range(10): a(f"v_writelane_b32 v104, s{64+2*k}, {k}")
        a("v_writelane_b32 v104, s90, 10\nv_writelane_b32 v104, s91, 11\nv_writelane_b32 v104, s84, 12\nv_writelane_b32 v104, s86, 13\nv_writelane_b32 v104, s88, 14\nv_writelane_b32 v104, s94, 15")
        a(f"v_lshrrev_b32 v105, 2, v{vLL}\ns_mov_b64 exec, 0xffff\nbuffer_store_dword v104, v105, {WSR}, s{sT} offen\ns_mov_b64 exec, -1\ns_waitcnt vmcnt(0)")
```

```python
from asmlib import *
from layout import *

def srd(a, s, base_s, nbytes):
    a(f"s_mov_b32 s{s}, s{base_s}\ns_mov_b32 s{s+1}, s{base_s+1}\ns_mov_b32 s{s+2}, {hex(nbytes)}\ns_mov_b32 s{s+3}, 0x00020000")

def bits(a, dst, terms, tmp, src):
    first = True
    for lo, width, sh in terms:
        a(f"v_bfe_u32 v{tmp}, {src}, {lo}, {width}")
        if first: a(f"v_lshlrev_b32 v{dst}, {sh}, v{tmp}"); first = False
        else: a(f"v_lshl_add_u32 v{dst}, v{tmp}, {sh}, v{dst}")

class Gaps:
    def __init__(self): self.g = {}
    def add(self, k, *ins):
        for x in ins:
            if isinstance(x, (list, tuple)): self.add(k, *x)
            else: self.g.setdefault(k, []).append(x)
    def spread(self, lst, k0, per=1, step=1):
        for i, x in enumerate(lst): self.add(k0 + (i // per)*step, x)
        return k0 + ((len(lst) + per - 1) // per)*step
    def weave(self, main):
        out = []
        def key(x):
            op = x.split()[0]
            if op.startswith("s_"): return 0
            if op.startswith(("ds_", "buffer_")): return 1
            return 2
        assert max(self.g, default=0) < len(main), (max(self.g), len(main))
        for k, m in enumerate(main):
            out.append(m)
            out += sorted(self.g.get(k, []), key=key)
        return out

def cvt(d, x, y): return f"v_cvt_pk_bf16_f32 v{d}, v{x}, v{y}"

def dstamp(a, k):
    a(f"s_memtime s[{64+4*k}:{65+4*k}]\ns_memrealtime s[{66+4*k}:{67+4*k}]")
def ddump(a, n, idx_sreg, wsr=12):
    a("s_waitcnt lgkmcnt(0)")
    for k in range(n):
        a(f"v_writelane_b32 v2, s{64+4*k}, {2*k}\nv_writelane_b32 v2, s{66+4*k}, {2*k+1}")
    a(f"s_lshl_b32 s62, s{idx_sreg}, 2\ns_add_u32 s62, s62, s4\ns_lshl_b32 s62, s62, 6\ns_add_u32 s62, s62, {WS_DIAG}")
    a(f"v_mbcnt_lo_u32_b32 v3, -1, 0\nv_lshlrev_b32 v3, 2, v3\ns_mov_b64 exec, 0xffff\nbuffer_store_dword v2, v3, s[{wsr}:{wsr+3}], s62 offen\ns_mov_b64 exec, -1\ns_waitcnt vmcnt(0)")
```

```python
MB = 1 << 20
WS_QA, WS_KA, WS_VA = 0, 16*MB, 32*MB
WS_QB, WS_KB, WS_VB = 48*MB, 64*MB, 80*MB
WS_CA, WS_CB = 96*MB, 112*MB
WS_KVM = 129*MB
WS_PB = 138*MB
WS_MEM = 139*MB
WS_DIAG = 142*MB
WS_SIZE = 256*MB
KA_AX, KA_MEM0, KA_AWQ, KA_AWK, KA_AWV, KA_AWO, KA_SEG, KA_BX, KA_BC, KA_BWQ, KA_BWK, KA_BWV, KA_BWO, KA_OUT, KA_DBG, KA_WS = [8*i for i in range(16)]
import math
QSCALE = (128 ** -0.5) * math.log2(math.e)
import struct
def f32hex(x): return "0x%08x" % struct.unpack("<I", struct.pack("<f", x))[0]

DBG_RDY, DBG_XCNT, DBG_TOT, DBG_OVF = 0, 64, 128, 132
```

```python
from common_gen import *
sW = 4; sWSR = 12; sWWR = 8; sOSR = 16
pCG = 20
pCTX = 21
pOCOL = 22
pTB, pSTR, pCNT = 23, 24, 25
sG, sI, sOO, sLP, sT = 28, 29, 30, 31, 36
vL16, vLW, vLR, vOA, vT = 1, 2, 3, 4, 5
ACC = 16; RED = 32; XF = 64; NX = 48

def gen_oproj_setup(a):
    WWR = f"s[{sWWR}:{sWWR+3}]"
    a(f"v_lshlrev_b32 v{vL16}, 4, v0")
    bits(a, vT+1, [(2, 4, 10), (0, 2, 4)], vT, "v0")
    bits(a, vT+2, [(5, 1, 8), (2, 2, 6), (4, 1, 5), (0, 2, 3)], vT, "v0")
    a(f"""
    s_lshl_b32 s{sT+2}, s{sW}, 15
    v_add_u32 v{vT+2}, s{sT+2}, v{vT+2}
    s_lshl_b32 s{sT+4}, s{sW}, 20
    s_lshl_b32 s{sT+3}, s{pCG}, 6
    s_add_u32 s{sT+4}, s{sT+4}, s{sT+3}
    """)
    def wdma(p):
        for i in range(16):
            a(f"s_add_u32 m0, s{sT+2}, {(p & 1)*16384 + i*1024}")
            a(f"s_add_u32 s{sT+3}, s{sT+4}, {(256*p + 16*i)*1024}")
            a(f"buffer_load_dwordx4 v{vT+1}, {WWR}, s{sT+3} offen lds")
    wdma(0); wdma(1)
    for p in range(4):
        a(f"s_waitcnt vmcnt({16 if p < 3 else 0})")
        for k in range(16):
            for u in range(2):
                a(f"ds_read_b64_tr_b16 {ar((16*p + k)*4 + 2*u, 2)}, v{vT+2} offset:{(p & 1)*16384 + (16*k + 8*u)*64}")
        a("s_waitcnt lgkmcnt(0)")
        if p + 2 < 4: wdma(p + 2)
    a(f"""
    s_lshl_b32 s{sT}, s{sW}, 12
    s_add_u32 s{sT}, s{sT}, 131072
    v_add_u32 v{vLW}, s{sT}, v{vL16}
    s_lshl_b32 s{sT}, s{sW}, 10
    s_add_u32 s{sT}, s{sT}, 131072
    v_add_u32 v{vLR}, s{sT}, v{vL16}
    """)
    bits(a, vOA, [(0, 5, 11), (5, 1, 3)], vT, "v0")
    a(f"""
    s_lshl_b32 s{sT}, s{pCG}, 6
    s_lshl_b32 s{sT+1}, s{sW}, 4
    s_add_u32 s{sT}, s{sT}, s{sT+1}
    s_add_u32 s{sT}, s{sT}, s{pOCOL}
    v_add_u32 v{vOA}, s{sT}, v{vOA}
    s_lshl_b32 s{sT}, s{sW}, 16
    s_add_u32 s{pCTX}, s{pCTX}, s{sT}
    """)

def gen_oproj_run(a, wait=None, ld=""):
    WSR = f"s[{sWSR}:{sWSR+3}]"; OSR = f"s[{sOSR}:{sOSR+3}]"
    def ldf(f):
        L = []
        if f and f % 4 == 0: L.append(f"s_add_u32 s{sG}, s{sG}, 4096")
        L.append(f"buffer_load_dwordx4 {vr(XF + 4*(f % NX), 4)}, v{vL16}, {WSR}, s{sG} offen offset:{(f & 3)*1024} {ld}")
        return L
    def start():
        if wait: wait(a)
        a(f"s_lshl_b32 s{sG}, s{pTB}, 18\ns_add_u32 s{sG}, s{sG}, s{pCTX}")
        for f in range(NX): a.extend(ldf(f))
    loop = a.lab("op_loop"); last = a.lab("op_last"); done = a.lab("op_done")
    a(f"s_mov_b32 s{sI}, 0")
    start()
    a(f"{loop}:")
    for f in range(64):
        issued = min(64, NX + max(0, f - 1))
        a(f"s_waitcnt vmcnt({issued - f - 1})")
        acc = vr(ACC, 16)
        a(f"v_mfma_f32_32x32x16_bf16 {acc}, {ar(4*f, 4)}, {vr(XF + 4*(f % NX), 4)}, {'0' if f == 0 else acc}")
        if f >= 1 and NX + f - 1 < 64: a.extend(ldf(NX + f - 1))
    a(f"""
    s_lshl_b32 s{sOO}, s{pTB}, 16
    s_add_u32 s{pTB}, s{pTB}, s{pSTR}
    s_add_u32 s{sI}, s{sI}, 1
    """)
    for q in range(4): a(f"ds_write_b128 v{vLW}, {vr(ACC + 4*q, 4)} offset:{q*1024}")
    def epi():
        a("s_waitcnt lgkmcnt(0)\ns_barrier")
        for w in range(4): a(f"ds_read_b128 {vr(RED + 4*w, 4)}, v{vLR} offset:{w*4096}")
        a(f"v_xor_b32 v{vLW}, 16384, v{vLW}\nv_xor_b32 v{vLR}, 16384, v{vLR}\ns_waitcnt lgkmcnt(0)")
        for r in range(4): a(f"v_add_f32 v{RED+r}, v{RED+r}, v{RED+4+r}\nv_add_f32 v{RED+8+r}, v{RED+8+r}, v{RED+12+r}")
        for r in range(4): a(f"v_add_f32 v{RED+r}, v{RED+r}, v{RED+8+r}")
        a(cvt(RED, RED, RED+1)); a(cvt(RED+1, RED+2, RED+3))
        a(f"buffer_store_dwordx2 {vr(RED, 2)}, v{vOA}, {OSR}, s{sOO} offen")
    if wait:
        epi()
        a(f"s_cmp_ge_u32 s{sI}, s{pCNT}\ns_cbranch_scc1 {done}")
        start()
        a(f"s_branch {loop}")
    else:
        a(f"s_cmp_ge_u32 s{sI}, s{pCNT}\ns_cbranch_scc1 {last}")
        start(); epi()
        a(f"s_branch {loop}\n{last}:")
        epi()
    a(f"{done}:\ns_waitcnt vmcnt(0)")
```

```python
from common_gen import *

XP = 1040; XSLOT = 32*XP
sW = 4
sWSR = 12
sXSR = 16
sWWR = 8
pWOFF = 20
pROW = 21
pSTR = 22
pCNT = 23
pOUT = 24
pTYPE = 25
pSCALE = 26
sXO, sOO, sM0, sXSTR, sOSTR, sI, sT = 28, 29, 30, 31, 32, 33, 36
vL16, vXR, vT = 1, 2, 4
XF = 16; NXF = 8; ACC = [64, 96]; STG = 128
DIST = 6

def gen_proj(a, st="", signal=None, diag=False, nostore=False):
    WSR = f"s[{sWSR}:{sWSR+3}]"; XSR = f"s[{sXSR}:{sXSR+3}]"; WWR = f"s[{sWWR}:{sWWR+3}]"
    a(f"v_lshlrev_b32 v{vL16}, 4, v0")
    a(f"v_and_b32 v{vT}, 31, v0\nv_mul_u32_u24 v{vXR}, {XP}, v{vT}\nv_lshrrev_b32 v{vT}, 5, v0\nv_lshl_add_u32 v{vXR}, v{vT}, 4, v{vXR}")
    a(f"""
    s_lshl_b32 s{sXSTR}, s{pSTR}, 15
    s_lshl_b32 s{sOSTR}, s{pSTR}, 13
    s_lshl_b32 s{sXO}, s{pROW}, 15
    s_lshl_b32 s{sT}, s{sW}, 13
    s_add_u32 s{sXO}, s{sXO}, s{sT}
    s_mul_i32 s{sM0}, s{sW}, {8*XP}
    """)
    def xdma(slot_m0_expr):
        L = []
        for i in range(8):
            if i == 4: L.append([f"s_add_u32 s{sT+1}, s{sXO}, 4096"])
            L.append([f"s_add_u32 m0, s{sM0}, {i*XP - (i & 3)*1024}", f"buffer_load_dwordx4 v{vL16}, {XSR}, s{sXO if i < 4 else sT+1} offen offset:{(i & 3)*1024} lds"])
        L.append([f"s_add_u32 s{sXO}, s{sXO}, s{sXSTR}", f"s_add_u32 s{sM0}, s{sM0}, {XSLOT}"])
        L.append([f"s_cmp_ge_u32 s{sM0}, {4*XSLOT}", f"s_cselect_b32 s{sT+1}, {4*XSLOT}, 0", f"s_sub_u32 s{sM0}, s{sM0}, s{sT+1}"])
        return L
    bits(a, vT+1, [(3, 3, 13), (0, 3, 4)], vT, "v0")
    bits(a, vT+2, [(5, 1, 10), (2, 2, 7), (4, 1, 5), (0, 2, 3)], vT, "v0")
    a(f"s_lshl_b32 s{sT+2}, s{sW}, 14\ns_add_u32 s{sT+2}, s{sT+2}, {2*XSLOT}\nv_add_u32 v{vT+2}, s{sT+2}, v{vT+2}")
    def wdma(p):
        for i in range(8):
            a(f"s_add_u32 m0, s{sT+2}, {(p & 1)*8192 + i*1024}")
            a(f"s_add_u32 s{sT+3}, s{pWOFF}, {(64*p + 8*i)*8192}")
            a(f"buffer_load_dwordx4 v{vT+1}, {WWR}, s{sT+3} offen lds")
    wdma(0); wdma(1)
    for x in xdma(0): a.extend(x)
    for x in xdma(1): a.extend(x)
    for p in range(8):
        a(f"s_waitcnt vmcnt({[24, 24, 8, 8, 8, 8, 8, 0][p]})")
        for k4 in range(4):
            for cb in range(2):
                for u in range(2):
                    r = (cb*32 + 4*p + k4)*4 + 2*u
                    a(f"ds_read_b64_tr_b16 {ar(r, 2)}, v{vT+2} offset:{(p & 1)*8192 + (16*k4 + 4*u)*128 + cb*64}")
        a("s_waitcnt lgkmcnt(0)")
        if p + 2 < 8: wdma(p + 2)
    a(f"""
    s_lshl_b32 s{sT}, s{pROW}, 13
    s_add_u32 s{pOUT}, s{pOUT}, s{sT}
    s_mov_b32 s{sOO}, 0x80000000
    s_mov_b32 s{sI}, 0
    s_mov_b32 s{sT+4}, {2*XSLOT}
    s_barrier
    """)
    def xr(ks, half):
        return f"ds_read_b128 {vr(XF + 4*(ks % NXF), 4)}, v{vXR} offset:{half*XSLOT + ks*32}"
    if diag: dstamp(a, 1)
    for ks in range(DIST): a(xr(ks, 0))
    lv = a.lab("pj_v"); lend = a.lab("pj_end")
    a(f"s_cmp_lg_u32 s{pTYPE}, 0\ns_cbranch_scc1 {lv}")
    def epi(p, vt):
        V = []; S = []
        for q in range(4):
            b = ACC[p] + 8*q
            if not vt: V += [f"v_mul_f32 v{b+r}, s{pSCALE}, v{b+r}" for r in range(8)]
            V += [cvt(STG + 4*q + r, b + 2*r, b + 2*r + 1) for r in range(4)]
            S.append((len(V), f"buffer_store_dwordx4 {vr(STG + 4*q, 4)}, v{vL16}, {WSR}, s{sOO} offen offset:{q*1024} {st}"))
        return V, S
    for vt in (0, 1):
        if vt: a(f"{lv}:")
        loop = a.lab("pj_loop"); fin = [a.lab("pj_fin0"), a.lab("pj_fin1")]
        a(f"{loop}:")
        for p in (0, 1):
            main = []
            for ks in range(32):
                for cb in range(2):
                    acc = vr(ACC[p] + 16*cb, 16); w = ar((cb*32 + ks)*4, 4); x = vr(XF + 4*(ks % NXF), 4)
                    A, B = (x, w) if vt else (w, x)
                    main.append(f"v_mfma_f32_32x32x16_bf16 {acc}, {A}, {B}, {'0' if ks == 0 else acc}")
            G = Gaps()
            for ks in range(32):
                nk = ks + DIST
                if nk == 32:
                    G.add(2*ks - 1, "s_waitcnt vmcnt(12)", "s_barrier")
                if nk < 32: G.add(2*ks, xr(nk, p))
                else: G.add(2*ks, xr(nk - 32, 1 - p))
                G.add(2*ks + 1, f"s_waitcnt lgkmcnt({DIST - 1})")
            if p == 1:
                G.add(2*(32 - DIST) - 1, f"v_add_u32 v{vXR}, s{sT+4}, v{vXR}")
                G.add(56, f"s_sub_u32 s{sT+4}, 0, s{sT+4}")
            dm = xdma(0)
            for i, x in enumerate(dm):
                if len(x) == 2 and "m0" in x[0]: G.add(2*i, x[0]); G.add(2*i + 1, x[1])
                else: G.add(2*i, x)
            V, S = epi(1 - p, vt)
            per = 2 if not vt else 1
            g0 = 4
            G.spread(V, g0, per)
            gs = [max(23 + 2*k, g0 + (n + per - 1)//per + 1) | 1 for k, (n, _) in enumerate(S)]
            for g, (n, x) in zip(gs, S): G.add(g, x)
            G.add(44, f"s_mov_b32 s{sOO}, s{pOUT}" if not nostore else "s_nop 0"); G.add(46, f"s_add_u32 s{pOUT}, s{pOUT}, s{sOSTR}")
            if signal: G.add(54, signal(a))
            G.add(60, f"s_add_u32 s{sI}, s{sI}, 1"); G.add(62, f"s_cmp_ge_u32 s{sI}, s{pCNT}")
            if p == 0: a(f"s_waitcnt lgkmcnt({DIST - 1})")
            a.extend(G.weave(main))
            if p == 0: a(f"s_cbranch_scc1 {fin[0]}")
            else: a(f"s_cbranch_scc0 {loop}")
        for p in (1, 0):
            a(f"{fin[p]}:")
            V, S = epi(p, vt)
            k = 0
            for n, x in S:
                a.extend(V[k:n]); a(x); k = n
            if not (vt == 1 and p == 0): a(f"s_branch {lend}")
    a(f"{lend}:")
    a("s_waitcnt vmcnt(0) lgkmcnt(0)")
```

```python
from common_gen import *
def gen_role(a, sROLE=5):
    ovf = a.lab("rl_ovf"); got = a.lab("rl_got"); oth = a.lab("rl_oth"); w1 = a.lab("rl_w"); w1d = a.lab("rl_wd"); nox = a.lab("rl_nox")
    D = "s[16:19]"
    a(f"""
    s_load_dwordx2 s[40:41], s[0:1], {KA_DBG}
    s_getreg_b32 s42, hwreg(HW_REG_XCC_ID, 0, 4)
    v_lshrrev_b32 v1, 6, v0
    v_and_b32 v0, 63, v0
    v_readfirstlane_b32 s4, v1
    v_mov_b32 v2, 0
    s_waitcnt lgkmcnt(0)
    """)
    srd(a, 16, 40, 256)
    a(f"""
    s_cmp_lg_u32 s4, 0
    s_cbranch_scc1 {oth}
    s_mov_b64 exec, 1
    s_mov_b32 s44, 32
    s_cmp_ge_u32 s42, 8
    s_cbranch_scc1 {nox}
    s_lshl_b32 s43, s42, 2
    v_mov_b32 v3, 1
    buffer_atomic_add v3, v2, {D}, s43 offen offset:{DBG_XCNT} sc0
    s_waitcnt vmcnt(0)
    v_readfirstlane_b32 s44, v3
    {nox}:
    v_mov_b32 v4, 1
    buffer_atomic_add v4, v2, {D}, 0 offen offset:{DBG_TOT}
    s_cmp_ge_u32 s44, 32
    s_cbranch_scc1 {ovf}
    s_lshl_b32 s45, s42, 5
    s_add_u32 s45, s45, s44
    s_branch {got}
    {ovf}:
    s_mov_b32 s46, 0
    {w1}:
    buffer_load_dword v3, v2, {D}, 0 offen offset:{DBG_TOT} sc1
    s_waitcnt vmcnt(0)
    v_readfirstlane_b32 s47, v3
    s_add_u32 s46, s46, 1
    s_cmp_gt_u32 s46, 0x400000
    s_cbranch_scc1 {w1d}
    s_cmp_lt_u32 s47, 256
    s_cbranch_scc1 {w1}
    {w1d}:
    v_mov_b32 v3, 1
    buffer_atomic_add v3, v2, {D}, 0 offen offset:{DBG_OVF} sc0
    buffer_load_dwordx4 v[4:7], v2, {D}, 0 offen offset:{DBG_XCNT} sc1
    buffer_load_dwordx4 v[8:11], v2, {D}, 0 offen offset:{DBG_XCNT + 16} sc1
    s_waitcnt vmcnt(0)
    v_readfirstlane_b32 s46, v3
    s_mov_b32 s45, 255
    s_mov_b32 s48, 0
    """)
    for x in range(8):
        a(f"""
        v_readfirstlane_b32 s47, v{4+x}
        s_min_u32 s47, s47, 32
        s_add_u32 s49, s47, s46
        s_add_u32 s49, s49, {32*x}
        s_sub_u32 s47, 32, s47
        s_cmp_lt_u32 s46, s47
        s_cselect_b32 s50, 1, 0
        s_andn2_b32 s50, s50, s48
        s_cmp_lg_u32 s50, 0
        s_cselect_b32 s45, s49, s45
        s_or_b32 s48, s48, s50
        s_sub_u32 s46, s46, s47
        """)
    a(f"""
    {got}:
    v_mov_b32 v3, s45
    ds_write_b32 v2, v3
    s_mov_b64 exec, -1
    s_waitcnt lgkmcnt(0)
    {oth}:
    s_barrier
    ds_read_b32 v3, v2
    s_waitcnt lgkmcnt(0)
    v_readfirstlane_b32 s{sROLE}, v3
    s_and_b32 s{sROLE}, s{sROLE}, 255
    s_barrier
    """)
```

```python
import sys
sys.path.insert(0, "gen")
from proj import *
def proj_kernel(a, **kw):
    a(f"""
    s_cmp_ge_u32 s2, 192
    s_cbranch_scc1 Lexit
    s_load_dwordx2 s[40:41], s[0:1], {KA_WS}
    v_lshrrev_b32 v1, 6, v0
    v_and_b32 v0, 63, v0
    v_readfirstlane_b32 s{sW}, v1
    s_lshr_b32 s5, s2, 1            ; slice
    s_and_b32 s{pROW}, s2, 1
    s_mov_b32 s{pSTR}, 2
    s_mov_b32 s{pCNT}, 32
    """)
    decode_slice(a, 5)
    dstamp(a, 0)
    gen_proj(a, diag=True, **kw)
    dstamp(a, 2); ddump(a, 3, 2)
    a("Lexit:\ns_endpgm")
def decode_slice(a, sS):
    a(f"""
    s_cmp_ge_u32 s{sS}, 48
    s_cselect_b32 s42, 1, 0            ; isB
    s_cselect_b32 s43, 48, 0
    s_sub_u32 s{sS}, s{sS}, s43
    s_cmp_ge_u32 s{sS}, 32
    s_cselect_b32 s43, 1, 0            ; isQ
    s_cselect_b32 s44, {KA_BX}, {KA_BC}
    s_cmp_eq_u32 s42, 0
    s_cselect_b32 s44, {KA_AX}, s44
    s_lshr_b32 s45, s{sW}, 1
    s_add_u32 s46, s45, 1
    s_cmp_eq_u32 s43, 1
    s_cselect_b32 s46, 0, s46          ; m
    ; head
    s_sub_u32 s47, s{sS}, 32
    s_lshl_b32 s47, s47, 1
    s_add_u32 s47, s47, s45
    s_cmp_eq_u32 s43, 1
    s_cselect_b32 s47, s47, s{sS}      ; head
    s_cselect_b32 s{pSCALE}, {f32hex(QSCALE)}, 1.0
    s_cmp_eq_u32 s46, 2
    s_cselect_b32 s{pTYPE}, 1, 0
    s_mul_i32 s48, s42, {KA_BWQ - KA_AWQ}
    s_lshl_b32 s49, s46, 3
    s_add_u32 s48, s48, s49
    s_add_u32 s48, s48, {KA_AWQ}
    s_load_dwordx2 s[50:51], s[0:1], s48
    s_load_dwordx2 s[52:53], s[0:1], s44
    s_and_b32 s45, s{sW}, 1
    s_lshl_b32 s{pWOFF}, s47, 8
    s_lshl_b32 s49, s45, 7
    s_add_u32 s{pWOFF}, s{pWOFF}, s49
    s_mul_i32 s48, s42, 3
    s_add_u32 s48, s48, s46
    s_lshl_b32 s{pOUT}, s48, 24
    s_lshl_b32 s49, s47, 19
    s_add_u32 s{pOUT}, s{pOUT}, s49
    s_lshl_b32 s49, s45, 12
    s_add_u32 s{pOUT}, s{pOUT}, s49
    s_waitcnt lgkmcnt(0)
    """)
    srd(a, sWSR, 40, WS_SIZE); srd(a, sXSR, 52, 2*MB); srd(a, sWWR, 50, 4*MB)
if __name__ == "__main__":
  for name, kw in eval(sys.argv[1]).items():
    a = Asm(); proj_kernel(a, **kw)
    txt, n = kernel_text("proj_kernel", a.L, relaxed=True)
    open(f"work/{name}.s", "w").write('; @launch grid=(256,1,1) block=(256,1,1) lds=163840\n.amdgcn_target "amdgcn-amd-amdhsa--gfx950"\n.text\n' + txt)
```

```python
import sys
sys.path.insert(0, "gen"); sys.path.insert(0, "work")
from common_gen import *
import proj, attn, oproj, aattn, chain6, roles
from gen_t_proj import decode_slice
PRO = f"""
s_load_dwordx2 s[40:41], s[0:1], {KA_WS}
v_lshrrev_b32 v1, 6, v0
v_and_b32 v0, 63, v0
v_readfirstlane_b32 s4, v1
"""
def k_proj():
    a = Asm(); a.uid = 1000
    a("s_cmp_ge_u32 s2, 192\ns_cbranch_scc1 pj_exit"); a(PRO)
    a(f"s_and_b32 s5, s2, 7\ns_mul_i32 s5, s5, 12\ns_lshr_b32 s6, s2, 4\ns_add_u32 s5, s5, s6\ns_bfe_u32 s{proj.pROW}, s2, 0x10003\ns_mov_b32 s{proj.pSTR}, 2\ns_mov_b32 s{proj.pCNT}, 32")
    decode_slice(a, 5); proj.gen_proj(a)
    a("pj_exit:\ns_endpgm"); return a
def k_main():
    a = Asm(); a.uid = 2000
    a("s_cmp_ge_u32 s2, 256\ns_cbranch_scc1 mn_exit")
    roles.gen_role(a, 5)
    a("s_cmp_ge_u32 s5, 32\ns_cbranch_scc1 mn_bulk\ns_mov_b32 s3, s5")
    chain6.gen_chain(a, modes=("", "sc1"), own_prologue=False, rdelay=16, pdelay=8, rsp=0, psp=0, wsplit=(4, 2, 4, 2))
    a("s_endpgm\nmn_bulk:")
    a(f"""
    s_load_dwordx2 s[40:41], s[0:1], {KA_WS}
    s_lshr_b32 s6, s5, 5
    s_sub_u32 s6, s6, 1              ; x-1 in 0..6
    s_and_b32 s7, s5, 31             ; t
    s_cmp_lt_u32 s6, 4
    s_cselect_b32 s8, 5, 4
    s_cselect_b32 s9, 52, 64
    s_mov_b32 s10, 0
    v_mov_b32 v255, v0
    s_waitcnt lgkmcnt(0)
    """)
    srd(a, 12, 40, WS_SIZE)
    a(f"""
    mn_task:
    s_mul_i32 s11, s7, s9
    s_lshr_b32 s11, s11, 8           ; t / nh
    s_sub_u32 s{attn.pI}, 7, s11
    s_mul_i32 s11, s11, s8
    s_sub_u32 s11, s7, s11           ; t % nh
    s_mul_i32 s11, s11, 7
    s_add_u32 s{attn.pH}, s11, s6
    """)
    attn.gen_attn(a)
    a(f"""
    s_cmp_lg_u32 s10, 0
    s_cbranch_scc1 mn_exit
    s_mov_b32 s10, 1
    s_sub_u32 s7, 63, s7
    s_lshl_b32 s11, s8, 3
    s_cmp_ge_u32 s7, s11
    s_cbranch_scc1 mn_exit
    s_barrier
    s_branch mn_task
    mn_exit:
    s_endpgm
    """); return a
def k_aattn():
    a = Asm(); a.uid = 3000
    a("s_cmp_ge_u32 s2, 256\ns_cbranch_scc1 aa_exit"); a(PRO); a("s_waitcnt lgkmcnt(0)")
    srd(a, 12, 40, WS_SIZE)
    aattn.gen_aattn_setup(a)
    a(f"s_and_b32 s{aattn.pH}, s2, 31\ns_lshr_b32 s{aattn.pS}, s2, 5\ns_lshl_b32 s{aattn.pS}, s{aattn.pS}, 3\ns_add_u32 s{aattn.pS}, s{aattn.pS}, s4\ns_mov_b32 s10, 0\naa_task:")
    aattn.gen_aattn_task(a)
    a(f"s_add_u32 s{aattn.pS}, s{aattn.pS}, 4\ns_add_u32 s10, s10, 1\ns_cmp_lt_u32 s10, 2\ns_cbranch_scc1 aa_task\ns_waitcnt vmcnt(0)\naa_exit:\ns_endpgm"); return a
def k_oproj():
    a = Asm(); a.uid = 4000
    o = oproj
    a("s_cmp_ge_u32 s2, 256\ns_cbranch_scc1 op_exit"); a(PRO)
    a(f"""
    s_and_b32 s5, s2, 1
    s_mul_i32 s6, s5, {KA_BWO - KA_AWO}
    s_add_u32 s6, s6, {KA_AWO}
    s_load_dwordx2 s[42:43], s[0:1], s6
    s_load_dwordx2 s[44:45], s[0:1], {KA_OUT}
    s_bfe_u32 s{o.pCG}, s2, 0x40003
    s_lshl_b32 s{o.pCTX}, s5, 24
    s_add_u32 s{o.pCTX}, s{o.pCTX}, {WS_CA}
    s_lshl_b32 s{o.pOCOL}, s5, 10
    s_and_b32 s{o.pTB}, s2, 6
    s_lshr_b32 s6, s2, 7
    s_add_u32 s{o.pTB}, s{o.pTB}, s6
    s_mov_b32 s{o.pSTR}, 8
    s_mov_b32 s{o.pCNT}, 8
    s_waitcnt lgkmcnt(0)
    """)
    srd(a, 12, 40, WS_SIZE); srd(a, 8, 42, 4*MB); srd(a, 16, 44, 4*MB)
    o.gen_oproj_setup(a); o.gen_oproj_run(a)
    a("op_exit:\ns_endpgm"); return a
ks = [("proj_kernel", k_proj(), 192), ("main_kernel", k_main(), 256), ("aattn_kernel", k_aattn(), 256), ("oproj_kernel", k_oproj(), 256)]
out = "".join(f"; @launch kernel={n} grid=({g},1,1) block=(256,1,1) lds=163840\n" for n, _, g in ks)
out += '.amdgcn_target "amdgcn-amd-amdhsa--gfx950"\n.text\n'
for n, a, g in ks:
    txt, nn = kernel_text(n, a.L, relaxed=True); out += txt
    print(n, len(a.L), "lines, nops", nn)
dst = sys.argv[1] if len(sys.argv) > 1 else "concat_heads__memory_aug_recurrent_mem_tr__compressed_kv_cla__prompt.s"
open(dst, "w").write(out)
```
